```python
import torch

def _softmax(x, axis=-1):
    return torch.softmax(x, dim=axis)
def _gelu(x):
    return torch.nn.functional.gelu(x, approximate="tanh")
def _silu(x):
    return torch.nn.functional.silu(x)
def _sigmoid(x):
    return torch.sigmoid(x)
def _layernorm(x, axis=-1, eps=1e-5):
    m = x.mean(dim=axis, keepdim=True)
    v = x.var(dim=axis, keepdim=True, unbiased=False)
    return (x - m) / torch.sqrt(v + eps)
def _scatter_add(tgt, idx, src, axis=0):
    return tgt.clone().index_add_(axis, idx, src)
def _segment_sum(src, seg, n):
    out = torch.zeros((n,) + src.shape[1:], dtype=src.dtype)
    return out.index_add_(0, seg, src)
def _pad(x, pw):
    flat = tuple(v for pair in reversed(pw) for v in pair)
    return torch.nn.functional.pad(x, flat)

kernel_name = 'sequential_preLN__mha_block__dense_activation_silu__prompt'

def setup_inputs():

    _w = (lambda a: (lambda t: t.to(torch.bfloat16) if t.is_floating_point() else t)(torch.as_tensor(a)))
    def _A_setup():
        B, S, D, H = 1, 2048, 512, 32
        return {
            "x": _w((lambda *s: torch.randn(*s, dtype=torch.bfloat16) * 0.05)(B, S, D)),
            "wqkv": _w((lambda *s: torch.randn(*s, dtype=torch.bfloat16) * 0.05)(D, 3 * D)),
            "wo": _w((lambda *s: torch.randn(*s, dtype=torch.bfloat16) * 0.05)(D, D)),
        }
    _A_in = _A_setup()

    def _B_setup():
        B, S, D, F = 1, 2048, 512, 1376
        return {
            "x": _w((lambda *s: torch.randn(*s, dtype=torch.bfloat16) * 0.05)(B, S, D)),
            "w1": _w((lambda *s: torch.randn(*s, dtype=torch.bfloat16) * 0.8)(D, F) * (D ** -0.5)),
            "w2": _w((lambda *s: torch.randn(*s, dtype=torch.bfloat16) * 0.2)(F, D) * (F ** -0.5)),
        }
    _B_in = _B_setup()

    return {
        "A_x": _A_in["x"],
        "A_wqkv": _A_in["wqkv"],
        "A_wo": _A_in["wo"],
        "B_x": _B_in["x"],
        "B_w1": _B_in["w1"],
        "B_w2": _B_in["w2"],
    }

def reference(A_x, A_wqkv, A_wo, B_x, B_w1, B_w2):
    def _A_ref(x, wqkv, wo):
        B, S, D = x.shape
        H = 32
        Dh = D // H
        qkv = (lambda x, *d: x.permute(*d))((x @ wqkv).reshape(B, S, 3, H, Dh), 2, 0, 3, 1, 4)
        q, k, v = qkv[0], qkv[1], qkv[2]
        scores = torch.einsum("bhqd,bhkd->bhqk", q, k) * (Dh ** -0.5)
        p = _softmax(scores, axis=-1)
        o = torch.einsum("bhqk,bhkd->bhqd", p, v)
        return (lambda x, *d: x.permute(*d))(o, 0, 2, 1, 3).reshape(B, S, D) @ wo

    def _B_ref(x, w1, w2):
        h = torch.einsum("bsd,df->bsf", x, w1)
        h = _silu(h)
        out = torch.einsum("bsf,fd->bsd", h, w2)
        return out

    x = A_x
    h = x + _A_ref(_layernorm(x, axis=-1), A_wqkv, A_wo)
    h2 = h + _B_ref(_layernorm(h, axis=-1), B_w1, B_w2)
    return h2
```

```python
import re, sys

TRANS = ("v_exp_", "v_log_", "v_rcp_", "v_rsq_", "v_sqrt_", "v_sin_", "v_cos_")
REG_RE = re.compile(r"(?<![\w.])([vas])(?:\[(\d+):(\d+)\]|(\d+))(?![\w])")


def regs_of(tok):
    out = set()
    for m in REG_RE.finditer(tok):
        k = m.group(1)
        if m.group(2) is not None:
            for i in range(int(m.group(2)), int(m.group(3)) + 1):
                out.add((k, i))
        else:
            out.add((k, int(m.group(4))))
    t = tok.strip()
    if t in ("vcc", "vcc_lo", "vcc_hi"):
        out.add(("s", "vcc"))
    if t in ("exec", "exec_lo", "exec_hi"):
        out.add(("s", "exec"))
    if t == "m0":
        out.add(("s", "m0"))
    return out


class Ins:
    __slots__ = ("text", "op", "ops", "mods", "kind", "defs", "uses", "label", "target", "passes",
                 "srcc", "srcab", "stdata", "is_trans", "is_dpp", "is_sdwa", "is_dot", "is_lds_dma",
                 "tag", "nopn", "raw")

    def __init__(self, text, tag=None):
        self.text = text
        self.tag = tag
        self.label = None
        self.target = None
        self.raw = False
        self.defs = set(); self.uses = set()
        self.srcc = set(); self.srcab = set(); self.stdata = set()
        self.passes = 0
        self.is_trans = self.is_dpp = self.is_sdwa = self.is_dot = self.is_lds_dma = False
        self.nopn = 1
        t = text.split(";")[0].strip()
        if t.endswith(":"):
            self.kind = "label"; self.label = t[:-1]; self.op = ""; return
        if t.startswith(".") or t == "":
            self.kind = "dir"; self.op = ""; return
        sp = t.split(None, 1)
        op = self.op = sp[0]
        rest = sp[1] if len(sp) > 1 else ""
        parts = []; depth = 0; cur = ""
        for ch in rest:
            if ch in "[(": depth += 1
            if ch in "])": depth -= 1
            if ch == "," and depth == 0:
                parts.append(cur.strip()); cur = ""
            else:
                cur += ch
        if cur.strip(): parts.append(cur.strip())
        mods = ""
        if parts:
            last = parts[-1].split(None, 1)
            if len(last) > 1 and not last[0].startswith("hwreg"):
                parts[-1] = last[0]; mods = last[1]
        self.ops = parts; self.mods = mods
        R = [regs_of(p) for p in parts]
        allr = set().union(*R) if R else set()
        if op.startswith("v_mfma") or op.startswith("v_smfmac"):
            self.kind = "mfma"
            self.passes = 8 if "32x32" in op else (4 if "16x16" in op else 2)
            self.defs = R[0]
            self.srcab = R[1] | R[2]
            if op.startswith("v_smfmac"):
                self.srcc = R[0]; self.srcab |= R[3]
            else:
                self.srcc = R[3]
            self.uses = self.srcab | self.srcc
        elif op.startswith("v_"):
            self.kind = "valu"
            self.is_trans = op.startswith(TRANS)
            self.is_dpp = ("_dpp" in op) or bool(re.search(r"row_|quad_perm|wave_", mods))
            self.is_sdwa = "_sdwa" in op
            self.is_dot = op.startswith("v_dot")
            if op.startswith("v_cmpx"):
                raise ValueError("v_cmpx not supported by checker")
            if op.startswith("v_nop"):
                pass
            elif op.startswith("v_permlane") or op.startswith("v_swap"):
                self.defs = R[0] | R[1]; self.uses = R[0] | R[1]
            elif re.match(r"v_(add|sub|subrev|addc|subb)_co", op):
                self.defs = R[0] | R[1]; self.uses = set().union(*R[2:])
            else:
                self.defs = R[0]
                self.uses = set().union(*R[1:]) if len(R) > 1 else set()
                if op.startswith(("v_fmac", "v_mac", "v_dot2c", "v_pk_fmac", "v_writelane")) or self.is_dpp or \
                        (self.is_sdwa and "UNUSED_PRESERVE" in mods):
                    self.uses |= R[0]
        elif op.startswith(("buffer_", "global_", "flat_", "scratch_")):
            self.kind = "vmem"
            lds = ("_lds_" in op) or bool(re.search(r"\blds\b", mods))
            if "load" in op and not lds:
                self.defs = R[0]; self.uses = set().union(*R[1:])
                if "d16" in op: self.uses |= R[0]
            elif lds:
                self.is_lds_dma = True; self.uses = allr | {("s", "m0")}
            elif "atomic" in op:
                ret = bool(re.search(r"\bsc0\b", mods))
                if op.startswith("global") and ret:
                    self.defs = R[0]; self.uses = set().union(*R[1:])
                elif op.startswith("buffer") and ret:
                    self.defs = R[0]; self.uses = allr
                else:
                    self.uses = allr
            elif op.startswith(("buffer_inv", "buffer_wbl2")):
                pass
            else:
                self.uses = allr
                if "x3" in op or "x4" in op:
                    self.stdata = R[0] if op.startswith("buffer") else R[1]
        elif op.startswith("ds_"):
            self.kind = "ds"
            if op.startswith(("ds_read", "ds_bpermute", "ds_permute", "ds_swizzle")) or "_rtn" in op:
                self.defs = R[0]; self.uses = set().union(*R[1:]) if len(R) > 1 else set()
            else:
                self.uses = allr
        elif op.startswith(("s_load", "s_buffer_load", "s_memtime", "s_memrealtime", "s_atomic")):
            self.kind = "smem"
            self.defs = R[0]; self.uses = set().union(*R[1:]) if len(R) > 1 else set()
        elif op.startswith("s_"):
            self.kind = "salu"
            if op == "s_nop":
                self.nopn = int(parts[0], 0) + 1
            elif op.startswith(("s_cbranch", "s_branch")):
                self.target = parts[0]
            elif op.startswith(("s_cmp", "s_bitcmp", "s_waitcnt", "s_barrier", "s_endpgm", "s_setprio", "s_sleep")):
                self.uses = allr
            elif "saveexec" in op:
                self.defs = R[0] | {("s", "exec")}; self.uses = set().union(*R[1:]) | {("s", "exec")}
            else:
                self.defs = R[0] if R else set()
                self.uses = set().union(*R[1:]) if len(R) > 1 else set()
                if op.startswith(("s_addk", "s_mulk", "s_cmov", "s_bitset")): self.uses |= R[0]
        else:
            raise ValueError("cannot parse: " + text)


def vregs(s): return {r for r in s if r[0] in "va"}
def sregs(s): return {r for r in s if r[0] == "s"}


def required(p, c):
    n = 0
    if p.kind == "valu":
        pv = vregs(p.defs); ps = sregs(p.defs)
        if c.kind == "mfma" and pv & c.uses:
            n = max(n, 3 if p.is_dot else 2)
        if c.kind == "valu":
            if p.is_trans and not c.is_trans and pv & c.uses: n = max(n, 1)
            if p.is_trans and c.is_trans and pv & c.uses: n = max(n, 1)
            if p.is_sdwa and pv & (c.uses | c.defs): n = max(n, 1)
            if p.is_dot and pv & (c.uses | c.defs):
                same_c = (c.op == p.op) and not (pv & set().union(*[regs_of(x) for x in c.ops[1:3]]))
                if not same_c: n = max(n, 3)
            if c.op.startswith(("v_readlane", "v_readfirstlane")) and pv & c.uses: n = max(n, 1)
            if c.is_dpp and pv & c.uses: n = max(n, 2)
            if c.op.startswith("v_permlane") and pv & c.uses: n = max(n, 2)
            if ps & c.uses:
                n = max(n, 4 if c.op.startswith(("v_readlane", "v_writelane")) else 2)
        if c.kind in ("vmem", "ds") and p.is_dot and pv & c.uses: n = max(n, 3)
        if c.kind == "vmem" and ps & c.uses: n = max(n, 5)
    if p.kind == "mfma":
        big = {2: 5, 4: 8, 8: 12}[p.passes]
        ovl = {2: 4, 4: 6, 8: 10}[p.passes]
        war = {2: 1, 4: 3, 8: 7}[p.passes]
        if c.kind == "mfma":
            if p.defs & c.srcab: n = max(n, big)
            if p.defs & c.srcc:
                if p.defs == c.srcc and p.passes == c.passes:
                    n = max(n, 2 if p.passes == 2 else 0)
                else:
                    n = max(n, ovl)
            elif p.defs & c.defs and not (p.defs == c.defs and p.passes == c.passes):
                n = max(n, ovl)
        elif c.kind in ("valu", "vmem", "ds"):
            if p.defs & (c.uses | c.defs): n = max(n, big)
            if p.srcc & c.defs: n = max(n, war)
    if p.kind == "salu" and ("s", "m0") in p.defs and (c.is_lds_dma or "addtid" in c.op):
        n = max(n, 1)
    if p.stdata and c.kind in ("valu", "mfma", "vmem", "ds") and p.stdata & c.defs:
        n = max(n, 2 if c.kind == "valu" else 1)
    return n


MAXD = 13


class Prog:
    def __init__(self):
        self.ins = []
        self.vm = []
        self.lg = []
        self.uid = 0

    def __call__(self, text, tag=None):
        for line in text.strip("\n").split("\n"):
            line = line.strip()
            if not line or line.startswith(";"):
                continue
            i = Ins(line, tag)
            self.ins.append(i)
            if i.kind == "vmem" and not i.op.startswith(("buffer_inv", "buffer_wbl2")):
                self.vm.append(tag)
            elif i.kind == "ds":
                self.lg.append(tag)
            elif i.op == "s_waitcnt":
                m = re.search(r"vmcnt\((\d+)\)", line)
                if m:
                    n = int(m.group(1)); self.vm = self.vm[len(self.vm) - n:] if n < len(self.vm) else self.vm
                    if n == 0: self.vm = []
                m = re.search(r"lgkmcnt\((\d+)\)", line)
                if m:
                    n = int(m.group(1)); self.lg = self.lg[len(self.lg) - n:] if n < len(self.lg) else self.lg
                    if n == 0: self.lg = []
        return self

    def label(self, name=None):
        if name is None:
            self.uid += 1; name = f"L_{self.uid}"
        return name

    def _cnt(self, q, tags):
        if not isinstance(tags, (list, set)): tags = [tags]
        last = -1
        for k, t in enumerate(q):
            if t in tags: last = k
        if last < 0: return None
        return len(q) - 1 - last

    def wait_txt(self, vm=None, lg=None):
        s = []
        if vm is not None:
            n = self._cnt(self.vm, vm)
            if n is not None: s.append(f"vmcnt({min(n, 63)})")
        if lg is not None:
            n = self._cnt(self.lg, lg)
            if n is not None: s.append(f"lgkmcnt({min(n, 15)})")
        return ("s_waitcnt " + " ".join(s)) if s else None

    def wait(self, vm=None, lg=None):
        t = self.wait_txt(vm, lg)
        if t: self(t)
        return t is not None

    def _cfg(self):
        ins = self.ins
        lab = {x.label: k for k, x in enumerate(ins) if x.kind == "label"}
        preds = [[] for _ in ins]
        for k, x in enumerate(ins):
            ft = not (x.op in ("s_branch", "s_endpgm") or x.op.startswith("s_setpc"))
            if ft and k + 1 < len(ins): preds[k + 1].append(k)
            if x.target is not None:
                preds[lab[x.target]].append(k)
        return lab, preds

    def fix_hazards(self, verbose=False):
        total = 0
        while True:
            lab, preds = self._cfg()
            ins = self.ins
            need = {}
            for k, c in enumerate(ins):
                if c.kind in ("label", "dir", "salu", "smem") :
                    continue
                worst = 0; why = None
                stack = [(p, 0) for p in preds[k]]
                seen = {}
                while stack:
                    j, d = stack.pop()
                    if j in seen and seen[j] <= d: continue
                    seen[j] = d
                    p = ins[j]
                    if p.kind in ("label", "dir"):
                        d2 = d
                    else:
                        r = required(p, c)
                        if r - d > worst: worst = r - d; why = p
                        d2 = d + p.nopn + (need.get(j, (0,))[0])
                    if d2 < MAXD:
                        for q in preds[j]: stack.append((q, d2))
                if worst > 0:
                    need[k] = (worst, why)
            if not need: break
            out = []
            for k, x in enumerate(ins):
                if k in need:
                    n, why = need[k]
                    if verbose: print(f"nop {n}: [{why.text}] -> [{x.text}]", file=sys.stderr)
                    total += n
                    out.append(Ins(f"s_nop {n - 1}"))
                out.append(x)
            self.ins = out
        return total

    def check_waits(self, maxvisit=3):
        ins = self.ins
        lab, _ = self._cfg()
        errs = set()
        seen = {}
        stack = [(0, (), ())]
        steps = 0
        while stack:
            k, vm, lg = stack.pop()
            vm = list(vm); lg = list(lg)
            while k < len(ins):
                x = ins[k]
                steps += 1
                if steps > 20_000_000: raise RuntimeError("check_waits: too many steps")
                if x.kind == "label":
                    key = (k, tuple(vm), tuple(lg))
                    if key in seen: break
                    seen[key] = 1
                    cnt = seen.get(("n", k), 0) + 1
                    seen[("n", k)] = cnt
                    if cnt > 64: break
                if x.kind in ("label", "dir"):
                    k += 1; continue
                touch = x.uses | x.defs
                for q in (vm, lg):
                    for j in q:
                        d = ins[j].defs
                        if d & touch:
                            if not (d & x.uses) and x.kind == ins[j].kind and x.kind != "smem":
                                continue
                            errs.add((j, k))
                if x.op == "s_waitcnt":
                    m = re.search(r"vmcnt\((\d+)\)", x.text)
                    if m:
                        n = int(m.group(1)); vm = vm[max(0, len(vm) - n):] if n else []
                    m = re.search(r"lgkmcnt\((\d+)\)", x.text)
                    if m:
                        n = int(m.group(1))
                        if n == 0: lg = []
                        elif not any(ins[j].kind == "smem" and not ins[j].op.startswith("s_mem") for j in lg):
                            mt = [j for j in lg if ins[j].op.startswith("s_mem")]
                            ds = [j for j in lg if not ins[j].op.startswith("s_mem")]
                            lg = mt + ds[max(0, len(ds) - n):]
                elif x.kind == "vmem" and not x.op.startswith(("buffer_inv", "buffer_wbl2")):
                    vm.append(k)
                    if len(vm) > 63: errs.add((k, -63))
                elif x.kind in ("ds", "smem"):
                    lg.append(k)
                if x.op == "s_endpgm" or x.op.startswith("s_setpc"): break
                if x.target is not None:
                    t = lab[x.target]
                    if x.op == "s_branch":
                        k = t; continue
                    stack.append((t, tuple(vm), tuple(lg)))
                k += 1
        msgs = []
        for j, k in sorted(errs):
            if k < 0: msgs.append(f"vmcnt overflow at [{ins[j].text}]")
            else: msgs.append(f"missing wait: [{ins[j].text}] (#{j}) used by [{ins[k].text}] (#{k})")
        return msgs

    def text(self):
        out = []
        for x in self.ins:
            out.append(x.text if x.kind in ("label", "dir") else "    " + x.text)
        return "\n".join(out) + "\n"

    def maxregs(self):
        mv = ma = ms = -1
        for x in self.ins:
            for r in x.defs | x.uses:
                if not isinstance(r[1], int): continue
                if r[0] == "v": mv = max(mv, r[1])
                elif r[0] == "a": ma = max(ma, r[1])
                else: ms = max(ms, r[1])
        return mv + 1, ma + 1, ms + 1


def kernel_text(name, prog):
    return f".globl {name}\n.p2align 8\n.type {name},@function\n{name}:\n" + prog.text()


def descriptor(name, prog, force_v=None):
    nv, na, ns = prog.maxregs()
    if force_v: nv = max(nv, force_v)
    acc = max(4, (nv + 3) // 4 * 4)
    tot = acc + na if na else nv
    return f""".p2align 6
.amdhsa_kernel {name}
  .amdhsa_next_free_vgpr {tot}
  .amdhsa_next_free_sgpr {max(ns, 16)}
  .amdhsa_accum_offset {acc}
  .amdhsa_group_segment_fixed_size 0
  .amdhsa_kernarg_size 72
  .amdhsa_user_sgpr_count 2
  .amdhsa_user_sgpr_kernarg_segment_ptr 1
  .amdhsa_system_sgpr_workgroup_id_x 1
.end_amdhsa_kernel
"""
```

```python
from asmlib import Prog
from layout import *


def mfma32(d, a, b, c=None, ka="v", kb="v"):
    cc = f"v[{c}:{c+15}]" if c is not None else "0"
    return f"v_mfma_f32_32x32x16_bf16 v[{d}:{d+15}], {ka}[{a}:{a+3}], {kb}[{b}:{b+3}], {cc}"


def gen_k1(D=3, NS=4, prof=False):
    p = Prog()
    XL, WL, RL, S0 = 0, 32768, 131072, 147456
    ACQ, ACK, ACV = 16, 32, 48
    FB = (64, 80)
    SX, SXX, CQ, CK, CV = 96, 97, 98, 99, 100
    RD, RA = 104, 120
    vX = (8, 9, 10, 11); vW = (12, 13)
    p(f"""
    s_cmp_ge_u32 s2, 256
    s_cbranch_scc1 K1_END
    s_load_dwordx4 s[4:7], s[0:1], 0
    s_load_dwordx2 s[8:9], s[0:1], 16
    s_load_dwordx4 s[12:15], s[0:1], 32
    s_load_dwordx2 s[16:17], s[0:1], 64
    """)
    if prof: p("s_memtime s[70:71]")
    p(f"""
    v_lshrrev_b32 v2, 6, v0
    v_and_b32 v1, 63, v0
    v_readfirstlane_b32 s3, v2
    s_and_b32 s33, s2, 7
    s_lshr_b32 s34, s2, 3
    s_lshr_b32 s18, s33, 1
    s_lshl_b32 s18, s18, 3
    s_lshr_b32 s35, s34, 2
    s_add_u32 s18, s18, s35
    s_and_b32 s19, s33, 1
    s_lshl_b32 s19, s19, 2
    s_and_b32 s35, s34, 3
    s_add_u32 s19, s19, s35
    s_and_b32 s36, s3, 1             ; rt
    s_lshr_b32 s37, s3, 1            ; ct
    v_lshrrev_b32 v4, 3, v1          ; l/8
    v_and_b32 v5, 7, v1              ; l%8
    s_lshl_b32 s35, s3, 3
    v_add_u32 v6, s35, v4            ; row = 8w + l/8
    v_lshrrev_b32 v7, 1, v6
    v_and_b32 v7, 7, v7
    v_xor_b32 v7, v7, v5
    v_lshlrev_b32 v7, 4, v7
    v_lshl_add_u32 v2, v6, 10, v7    ; voffX
    v_lshrrev_b32 v7, 1, v4
    v_and_b32 v7, 1, v7
    v_lshlrev_b32 v7, 2, v7
    v_xor_b32 v7, v7, v5
    v_lshlrev_b32 v7, 4, v7
    v_mul_u32_u24 v3, 3072, v6
    v_add_u32 v3, v3, v7
    s_lshl_b32 s35, s19, 7
    v_add_u32 v3, s35, v3            ; voffW
    s_waitcnt lgkmcnt(0)
    s_lshl_b32 s35, s18, 16
    s_add_u32 s20, s4, s35
    s_addc_u32 s21, s5, 0
    s_mov_b32 s22, 65536
    s_mov_b32 s23, 0x20000
    s_mov_b32 s24, s6
    s_mov_b32 s25, s7
    s_mov_b32 s26, {512*3072}
    s_mov_b32 s27, 0x20000
    s_lshl_b32 s38, s3, 10
    s_mul_i32 s39, s3, 3072
    s_add_u32 s39, s39, {WL}
    """)

    def dma_list(c):
        slot = c % NS
        out = []
        for half in (0, 1):
            out.append([f"s_add_u32 m0, s39, {slot*24576 + half*4*3072}",
                        f"s_mov_b32 s40, {c*64*3072 + half*32*3072}",
                        "buffer_load_dwordx4 v3, s[24:27], s40 offen lds"])
            out.append(["buffer_load_dwordx4 v3, s[24:27], s40 offen offset:1024 lds"])
            out.append(["buffer_load_dwordx4 v3, s[24:27], s40 offen offset:2048 lds"])
            out.append([f"s_add_u32 m0, s38, {XL + slot*8192 + half*4096}",
                        f"s_mov_b32 s41, {c*128 + half*32768}",
                        "buffer_load_dwordx4 v2, s[20:23], s41 offen lds"])
        return out

    def emit_dma(grp, c):
        for t in grp: p(t, tag=("c", c))

    for c in range(D):
        for g in dma_list(c): emit_dma(g, c)

    p(f"""
    s_lshl_b32 s42, s2, 2
    s_add_u32 s42, s42, s3           ; gw
    s_mov_b32 s44, s16
    s_mov_b32 s45, s17
    s_mov_b32 s46, {WS_USED}
    s_mov_b32 s47, 0x20000
    s_mov_b32 s48, s16
    s_mov_b32 s49, s17
    s_mov_b32 s50, {WS_USED}
    s_mov_b32 s51, 0x20000
    s_mov_b32 s31, 0x20000
    v_and_b32 v14, 15, v1
    v_lshrrev_b32 v15, 4, v1         ; l/16
    v_lshrrev_b32 v101, 2, v14       ; r
    v_and_b32 v102, 3, v1            ; c
    s_cmp_lt_u32 s42, 352
    s_cbranch_scc0 K1_ROLE_N512
    ; W1 role
    s_and_b32 s52, s42, 15           ; ks
    s_lshr_b32 s53, s42, 4           ; cbk
    s_mov_b32 s28, s12
    s_mov_b32 s29, s13
    s_mov_b32 s30, {512*2752}
    s_mul_i32 s54, s52, {32*2752}
    s_lshl_b32 s35, s53, 7
    s_add_u32 s54, s54, s35
    s_mov_b32 s55, {8*2752}
    s_lshl_b32 s56, s53, 16
    s_lshl_b32 s35, s52, 10
    s_add_u32 s56, s56, s35
    s_add_u32 s56, s56, {W1F}
    s_mov_b32 s57, 16384
    s_mov_b32 s58, 32768
    s_mov_b32 s59, 32
    s_mov_b32 s60, 512
    v_mul_u32_u24 v103, 2752, v4
    v_lshl_add_u32 v103, v5, 4, v103
    v_lshlrev_b32 v15, 10, v15
    v_lshl_add_u32 v15, v101, 7, v15
    v_lshl_add_u32 v{RA}, v102, 3, v15
    s_branch K1_ROLE_DONE
K1_ROLE_N512:
    s_sub_u32 s35, s42, 352
    s_and_b32 s53, s35, 3
    s_lshl_b32 s53, s53, 1           ; j0
    s_lshr_b32 s52, s35, 2
    s_cmp_lt_u32 s52, 32
    s_cbranch_scc0 K1_ROLE_W2
    s_mov_b32 s28, s8
    s_mov_b32 s29, s9
    s_mov_b32 s30, {512*1024}
    s_lshl_b32 s56, s53, 16
    s_lshl_b32 s35, s52, 11
    s_add_u32 s56, s56, s35
    s_add_u32 s56, s56, {WOF}
    s_mov_b32 s58, 65536
    s_branch K1_ROLE_N512B
K1_ROLE_W2:
    s_sub_u32 s52, s52, 32
    s_mov_b32 s28, s14
    s_mov_b32 s29, s15
    s_cmp_lt_u32 s52, 86
    s_cselect_b32 s30, {1376*1024}, 0
    s_cselect_b32 s50, {WS_USED}, 0
    s_min_u32 s52, s52, 85
    s_lshl_b32 s56, s53, 2
    s_and_b32 s35, s52, 3
    s_add_u32 s56, s56, s35
    s_mul_i32 s56, s56, 22
    s_lshr_b32 s35, s52, 2
    s_add_u32 s56, s56, s35
    s_lshl_b32 s56, s56, 11
    s_add_u32 s56, s56, {W2F}
    s_mov_b32 s58, {4*22*2048}
K1_ROLE_N512B:
    s_lshl_b32 s54, s52, 14
    s_lshl_b32 s35, s53, 7
    s_add_u32 s54, s54, s35
    s_mov_b32 s55, 4096
    s_mov_b32 s57, 1024
    s_mov_b32 s59, 64
    s_mov_b32 s60, 1024
    v_lshlrev_b32 v103, 10, v15
    v_lshl_add_u32 v103, v14, 4, v103
    v_lshrrev_b32 v{RA}, 1, v15
    v_lshlrev_b32 v{RA}, 11, v{RA}
    v_and_b32 v15, 1, v15
    v_lshl_add_u32 v{RA}, v15, 5, v{RA}
    v_lshl_add_u32 v{RA}, v101, 8, v{RA}
    v_lshl_add_u32 v{RA}, v102, 3, v{RA}
K1_ROLE_DONE:
    s_lshl_b32 s35, s3, 12
    s_add_u32 s35, s35, {RL}
    v_add_u32 v{RA}, s35, v{RA}
    """)
    for i in range(4):
        p(f"s_add_u32 m0, s35, {i*1024}")
        if i: p("s_add_u32 s54, s54, s55")
        p("buffer_load_dwordx4 v103, s[28:31], s54 offen lds", tag="rl")
    p(f"""
    v_add_u32 v{RA+1}, s60, v{RA}
    v_add_u32 v{RA+2}, s59, v{RA}
    v_add_u32 v{RA+3}, s59, v{RA+1}
    v_add_u32 v{RA+4}, s59, v{RA+2}
    v_add_u32 v{RA+5}, s59, v{RA+3}
    v_add_u32 v{RA+6}, s59, v{RA+4}
    v_add_u32 v{RA+7}, s59, v{RA+5}
    v_and_b32 v14, 31, v1            ; n
    v_lshrrev_b32 v15, 5, v1         ; hh
    v_lshrrev_b32 v4, 1, v14
    v_and_b32 v4, 7, v4
    v_xor_b32 v4, v4, v15            ; hh ^ f
    s_lshl_b32 s35, s36, 12          ; rt*32*128
    v_lshl_add_u32 v5, v14, 7, s35
    """)
    for ks in range(4):
        p(f"v_xor_b32 v6, {2*ks}, v4\nv_lshl_add_u32 v{vX[ks]}, v6, 4, v5")
    p(f"""
    v_mul_u32_u24 v5, 3072, v15
    v_lshl_add_u32 v5, v101, 7, v5   ; + r*128
    v_bfe_u32 v6, v1, 3, 1
    v_xor_b32 v6, s37, v6
    v_lshl_add_u32 v5, v6, 6, v5
    v_bfe_u32 v6, v1, 4, 1
    v_lshl_add_u32 v5, v6, 5, v5
    v_lshl_add_u32 v5, v102, 3, v5
    v_add_u32 v{vW[0]}, {WL}, v5
    v_add_u32 v{vW[1]}, {WL + 49152}, v5
    s_mov_b32 s61, 0x3f803f80
    v_mov_b32 v{SX}, 0
    v_mov_b32 v{SXX}, 0
    v_mov_b32 v{CQ}, 0
    v_mov_b32 v{CK}, 0
    v_mov_b32 v{CV}, 0
    """)

    def rd(s, part):
        c, ks = divmod(s, 4); slot = c % NS; b = FB[s % 2]
        out = []
        if part == 0:
            out.append(f"ds_read_b128 v[{b}:{b+3}], v{vX[ks]} offset:{XL + slot*8192}")
        base = vW[slot // 2]; off = (slot % 2) * 24576 + ks * 6144 + part * 1024
        for i in range(2):
            out.append(f"ds_read_b64_tr_b16 v[{b+4+4*part+2*i}:{b+5+4*part+2*i}], v{base} offset:{off + i*512}")
        return out

    def emit_rd(s, part):
        for t in rd(s, part): p(t, tag=("r", s, part))

    if prof: p("s_memtime s[72:73]")
    p.wait(vm=("c", 0))
    p("s_barrier")
    if prof: p("s_memtime s[74:75]\ns_waitcnt lgkmcnt(0)")
    for part in range(3): emit_rd(0, part)
    pend = []
    for s in range(32):
        c, ks = divmod(s, 4); b = FB[s % 2]
        first = (s == 0)
        if ks == 3 and c < 7:
            t = p.wait_txt(vm=("c", c + 1))
            p((t + " lgkmcnt(0)") if t else "s_waitcnt lgkmcnt(0)")
            p("s_barrier")
            if c + D < 8 and NS == D: pend += [(g, c + D) for g in dma_list(c + D)]
        if ks == 0 and NS > D and c + D < 8:
            pend += [(g, c + D) for g in dma_list(c + D)]
        accs = [(ACQ, b + 4, b), (ACK, b + 8, b), (ACV, b, b + 12)]
        for part in range(3):
            p.wait(lg=("r", s, part))
            d, a, bb = accs[part]
            p(mfma32(d, a, bb, None if first else d))
            if s < 31: emit_rd(s + 1, part)
            if pend:
                g, cc = pend.pop(0); emit_dma(g, cc)
        lab = p.label()
        p(f"s_cmp_eq_u32 s37, {s % 2}\ns_cbranch_scc0 {lab}")
        for j in range(4):
            p(f"v_dot2c_f32_bf16 v{SX}, s61, v{b+j}\nv_dot2c_f32_bf16 v{SXX}, v{b+j}, v{b+j}")
        p(f"{lab}:")
        lab = p.label()
        p(f"s_cmp_eq_u32 s36, {s % 2}\ns_cbranch_scc0 {lab}")
        for j in range(4):
            p(f"v_dot2c_f32_bf16 v{CQ}, s61, v{b+4+j}\nv_dot2c_f32_bf16 v{CK}, s61, v{b+8+j}\nv_dot2c_f32_bf16 v{CV}, s61, v{b+12+j}")
        p(f"{lab}:")
        if s == 4 * D:
            for q in range(4):
                for i in range(2):
                    p(f"ds_read_b64_tr_b16 v[{RD+4*q+2*i}:{RD+4*q+2*i+1}], v{RA+2*q+i}", tag="rlr")
        if s == 4 * D + 1:
            p("v_lshlrev_b32 v103, 4, v1")
            p.wait(lg="rlr")
            for q in range(4):
                if q == 1: p("s_add_u32 s62, s56, s57")
                if q == 2: p("s_add_u32 s56, s56, s58")
                if q == 3: p("s_add_u32 s62, s56, s57")
                p(f"buffer_store_dwordx4 v[{RD+4*q}:{RD+4*q+3}], v103, s[48:51], {'s62' if q % 2 else 's56'} offen", tag="rls")
    assert not pend
    if prof: p("s_memtime s[76:77]\ns_waitcnt lgkmcnt(0)")
    T = 128
    p(f"""
    s_lshl_b32 s35, s36, 10
    s_lshl_b32 s40, s37, 4
    s_add_u32 s40, s40, s35
    s_add_u32 s40, s40, {S0}
    v_lshlrev_b32 v4, 5, v14
    v_lshl_add_u32 v5, v15, 3, v4
    v_add_u32 v5, s40, v5
    s_add_u32 s35, s35, {S0}
    v_add_u32 v4, s35, v4
    s_lshl_b32 s40, s37, 9
    s_add_u32 s40, s40, {S0 + 2048}
    v_lshl_add_u32 v6, v14, 4, s40
    s_lshl_b32 s41, s36, 3
    v_lshl_add_u32 v7, v15, 2, s41
    v_add_u32 v7, v6, v7
    ds_write_b64 v5, v[{SX}:{SXX}]
    ds_write_b32 v7, v{CQ}
    ds_write_b32 v7, v{CK} offset:1024
    ds_write_b32 v7, v{CV} offset:2048
    s_lshl_b32 s40, s3, 9
    s_add_u32 s40, s40, {S0 + 5120}
    v_lshl_add_u32 v8, v14, 2, s40
    v_lshl_add_u32 v9, v15, 4, s40
    s_waitcnt lgkmcnt(0)
    s_barrier
    ds_read_b128 v[64:67], v4
    ds_read_b128 v[68:71], v4 offset:16
    ds_read_b128 v[72:75], v6
    ds_read_b128 v[76:79], v6 offset:1024
    ds_read_b128 v[80:83], v6 offset:2048
    s_lshl_b32 s40, s19, 2
    s_lshl_b32 s41, s37, 1
    s_add_u32 s40, s40, s41          ; head0
    s_lshl_b32 s40, s40, 6
    s_lshl_b32 s41, s18, 1
    s_add_u32 s41, s41, s36          ; qt
    s_add_u32 s40, s40, s41
    s_lshl_b32 s52, s40, 10
    s_add_u32 s52, s52, {QF}
    s_add_u32 s53, s52, 65536
    s_lshl_b32 s54, s40, 11
    s_add_u32 s54, s54, {KV}
    s_add_u32 s55, s54, 131072
    v_lshlrev_b32 v10, 4, v1         ; l*16
    v_and_b32 v11, 3, v1
    v_bfe_u32 v12, v1, 2, 1
    v_lshl_add_u32 v11, v12, 3, v11
    v_bfe_u32 v12, v1, 3, 1
    v_lshl_add_u32 v11, v12, 2, v11  ; swap23(n%16)
    v_lshlrev_b32 v11, 4, v11
    v_lshl_add_u32 v11, v15, 8, v11
    v_bfe_u32 v12, v1, 4, 1
    v_lshl_add_u32 v11, v12, 17, v11
    s_waitcnt lgkmcnt(3)
    v_add_f32 v64, v64, v66
    v_add_f32 v65, v65, v67
    v_add_f32 v68, v68, v70
    v_add_f32 v69, v69, v71
    v_add_f32 v64, v64, v68
    v_add_f32 v65, v65, v69
    v_mul_f32 v84, {f2h(-1.0/512)}, v64      ; -mean
    v_mul_f32 v65, {f2h(1.0/512)}, v65
    v_fma_f32 v65, -v84, v84, v65
    v_max_f32 v65, 0, v65
    v_add_f32 v65, {f2h(1e-5)}, v65
    v_rsq_f32 v86, v65
    ds_write_b32 v8, v84 offset:128
    s_waitcnt lgkmcnt(1)
    v_add_f32 v72, v72, v73
    v_add_f32 v74, v74, v75
    v_add_f32 v76, v76, v77
    v_add_f32 v78, v78, v79
    ds_write_b32 v8, v86
    v_add_f32 v72, v72, v74
    v_add_f32 v76, v76, v78
    ds_write_b32 v8, v72 offset:256
    ds_write_b32 v8, v76 offset:384
    v_add_f32 v80, v80, v81
    v_add_f32 v82, v82, v83
    v_add_f32 v90, v80, v82
    v_mul_f32 v88, {f2h(0.25*1.4426950408889634)}, v86   ; q scale
    """)
    for arr, off in ((0, 256), (1, 384), (3, 128), (2, 0)):
        for q in range(4):
            p(f"ds_read_b128 v[{T+16*arr+4*q}:{T+16*arr+4*q+3}], v9 offset:{off + 32*q}", tag=("p", arr))
    O = 64
    for which, acc, arr, sc, so in ((0, ACQ, 0, 88, ("s52", "s53")), (1, ACK, 1, 86, ("s54", "s55"))):
        p.wait(lg=("p", arr))
        for r in range(0, 16, 2):
            p(f"v_pk_fma_f32 v[{acc+r}:{acc+r+1}], v[{T+16*arr+r}:{T+16*arr+r+1}], v[84:85], v[{acc+r}:{acc+r+1}] op_sel_hi:[1,0,1]")
        for r in range(0, 16, 2):
            p(f"v_pk_mul_f32 v[{acc+r}:{acc+r+1}], v[{acc+r}:{acc+r+1}], v[{sc}:{sc+1}] op_sel_hi:[1,0]")
        for pp in range(2):
            o = O + 8 * which + 4 * pp
            for j in range(4):
                p(f"v_cvt_pk_bf16_f32 v{o+j}, v{acc+8*pp+2*j}, v{acc+8*pp+2*j+1}")
            p(f"buffer_store_dwordx4 v[{o}:{o+3}], v10, s[44:47], {so[pp]} offen")
    p.wait(lg=[("p", 2), ("p", 3)])
    for r in range(0, 16, 2):
        p(f"v_pk_fma_f32 v[{ACV+r}:{ACV+r+1}], v[{T+48+r}:{T+48+r+1}], v[90:91], v[{ACV+r}:{ACV+r+1}] op_sel_hi:[1,0,1]")
    for r in range(0, 16, 2):
        p(f"v_pk_mul_f32 v[{ACV+r}:{ACV+r+1}], v[{ACV+r}:{ACV+r+1}], v[{T+32+r}:{T+32+r+1}]")
    for pp in range(2):
        o = O + 16 + 4 * pp
        for j in range(4):
            p(f"v_cvt_pk_bf16_f32 v{o+j}, v{ACV+8*pp+2*j}, v{ACV+8*pp+2*j+1}")
        p(f"buffer_store_dwordx4 v[{o}:{o+3}], v11, s[44:47], s54 offen offset:{1024 + 512*pp}")
    if prof:
        p(f"""
        s_memtime s[78:79]
        s_waitcnt vmcnt(0) lgkmcnt(0)
        s_memtime s[80:81]
        s_waitcnt lgkmcnt(0)
        s_lshl_b32 s35, s42, 5
        s_add_u32 s35, s35, {PROF}
        s_sub_u32 s72, s72, s70
        s_sub_u32 s74, s74, s70
        s_sub_u32 s76, s76, s70
        s_sub_u32 s78, s78, s70
        s_sub_u32 s80, s80, s70
        v_mov_b32 v4, s72
        v_mov_b32 v5, s74
        v_mov_b32 v6, s76
        v_mov_b32 v7, s78
        v_mov_b32 v8, s80
        v_mov_b32 v9, 0
        buffer_store_dwordx4 v[4:7], v9, s[44:47], s35 offen
        buffer_store_dword v8, v9, s[44:47], s35 offen offset:16
        """)
    p("K1_END:\ns_endpgm")
    return p, 147456 + 5120 + 2048
```

```python
from asmlib import Prog
from layout import *

LOG2E = 1.4426950408889634
SLOT = 2304
ATT_LDS = 64 * SLOT
TB, TSTR, HL = 0, 34816, 69632

VL = 2
VC, VF0, VF1 = 9, 10, 11
VK, VV0, VV1 = 12, 15, 18
QA, QB = 24, 28
P0, P1 = 32, 36
KB = (40, 44); V0B = (48, 56); V1B = (52, 60)
SA, SB, OA, OB = 64, 80, 96, 112
TMP = 128
W2V = 144
VTW, VTR, VXO, VHO, VSO = 9, 10, 11, 13, 15
VHW = 16
XR, HR = 128, 136


def R(k, a, n=4): return f"{k}[{a}:{a+n-1}]"


def m32(d, a, b, c=None, ka="v", kb="v"):
    cc = R("v", c, 16) if c is not None else "0"
    return f"v_mfma_f32_32x32x16_bf16 {R('v', d, 16)}, {R(ka, a)}, {R(kb, b)}, {cc}"


def m16(d, a, b, c=None, ka="v", kb="v"):
    cc = R("v", c) if c is not None else "0"
    return f"v_mfma_f32_16x16x32_bf16 {R('v', d)}, {R(ka, a)}, {R(kb, b)}, {cc}"


class K2:
    def __init__(self, name, opt, prof, pidx):
        self.p = Prog(); self.name = name; self.opt = opt; self.prof = prof; self.pidx = pidx
        self.nst = 0
        self.ld = ""
        self.st = ""

    def stamp(self):
        if self.prof:
            self.p(f"s_memtime s[{70+2*self.nst}:{71+2*self.nst}]")
            self.nst += 1
            assert self.nst <= 13

    def base(self, sd, src, const, terms):
        p = self.p
        first = True
        for sreg, mult in terms:
            t = "s96" if first else "s97"
            if mult & (mult - 1) == 0: p(f"s_lshl_b32 {t}, {sreg}, {mult.bit_length()-1}")
            else: p(f"s_mul_i32 {t}, {sreg}, {mult}")
            if not first: p("s_add_u32 s96, s96, s97")
            first = False
        if const: p(f"s_add_u32 s96, s96, {const}")
        p(f"s_add_u32 s{sd}, s{src}, s96\ns_addc_u32 s{sd+1}, s{src+1}, 0")

    def frag(self, kind, reg, sb, q, tag, mods=""):
        return (f"global_load_dwordx4 {R(kind, reg)}, v{VL + q // 8}, s[{sb}:{sb+1}] offset:{(q % 8) * 1024 - 4096}{mods}", tag)

    def prologue(self):
        p = self.p
        p(f"""
        s_cmp_ge_u32 s2, 256
        s_cbranch_scc1 {self.name}_END
        s_load_dwordx2 s[6:7], s[0:1], 64
        s_load_dwordx2 s[4:5], s[0:1], 0
        s_load_dwordx4 s[8:11], s[0:1], 48
        """)
        self.stamp()
        p(f"""
        v_lshrrev_b32 v2, 6, v0
        v_and_b32 v1, 63, v0
        v_readfirstlane_b32 s3, v2
        s_and_b32 s12, s2, 7
        s_lshr_b32 s13, s2, 3
        s_lshr_b32 s14, s13, 3
        s_and_b32 s15, s13, 7
        s_lshl_b32 s16, s12, 2
        s_add_u32 s16, s16, s14
        v_lshlrev_b32 v{VL}, 4, v1
        """)
        for k in range(1, 7): p(f"v_add_u32 v{VL+k}, {8192*k}, v{VL}")
        p("s_waitcnt lgkmcnt(0)")

    def finish(self):
        p = self.p
        if self.prof:
            p("s_waitcnt vmcnt(0)")
            self.stamp()
            p("s_waitcnt lgkmcnt(0)")
            p("s_lshl_b32 s17, s2, 2\ns_add_u32 s17, s17, s3")
            self.base(18, 6, PROF + self.pidx * 65536, [("s17", 64)])
            p("v_mov_b32 v32, 0")
            for k in range(1, self.nst):
                p(f"s_sub_u32 s17, s{70+2*k}, s70\nv_mov_b32 v33, s17\nglobal_store_dword v32, v33, s[18:19] offset:{4*(k-1)}")
        p(f"{self.name}_END:\ns_endpgm")

    def attn(self, extra=()):
        p = self.p; N = self.name
        self.base(20, 6, KV, [("s13", 131072)])
        p("s_lshl_b32 s17, s12, 2\ns_add_u32 s17, s17, s3")
        self.base(22, 6, QF, [("s13", 65536), ("s17", 2048)])
        p(f"""
        s_lshl_b32 s26, s3, 10
        v_add_u32 v{VF0}, s26, v{VL}
        s_lshr_b32 s24, s3, 1
        s_mul_i32 s24, s24, {SLOT}
        s_and_b32 s25, s3, 1
        s_lshl_b32 s25, s25, 10
        s_add_u32 m0, s24, s25
        v_add_u32 v{VF1}, 4096, v{VF0}
        """)
        p(f"global_load_lds_dwordx4 v{VF0}, s[20:21]", tag=("g", 0))
        p(f"global_load_dwordx4 {R('v', QA)}, v{VL}, s[22:23]", tag=("g", 0))
        p(f"global_load_dwordx4 {R('v', QB)}, v{VL}, s[22:23] offset:1024", tag=("g", 0))
        p(f"s_add_u32 m0, m0, {2*SLOT}\ns_mul_i32 s25, s3, {SLOT}\ns_lshl_b32 s26, s3, 11")
        p(f"global_load_lds_dwordx4 v{VF1}, s[20:21]", tag=("g", 2))
        p(f"v_add_u32 v{VC}, s26, v{VL+1}")
        G0 = self.opt.get("G0", 3)

        def grp(G):
            return [(f"s_add_u32 m0, s25, {G*4*SLOT}", None), (f"global_load_lds_dwordx4 v{VC}, s[20:21]", ("g", 4*G)),
                    (f"global_load_lds_dwordx4 v{VC}, s[20:21] offset:1024", ("g", 4*G)), (f"v_add_u32 v{VC}, 8192, v{VC}", None)]
        for G in range(1, G0):
            for t, tag in grp(G): p(t, tag=tag)
        p(f"""
        v_lshrrev_b32 v64, 4, v1
        s_lshl_b32 s26, s3, 4
        v_add_u32 v64, s26, v64
        v_mul_u32_u24 v64, {SLOT}, v64
        v_and_b32 v65, 15, v1
        v_lshl_add_u32 v64, v65, 4, v64
        v_mov_b32 v68, 0x3f803f80
        v_mov_b32 v69, 0x3f803f80
        v_mov_b32 v70, 0x3f803f80
        v_mov_b32 v71, 0x3f803f80
        ds_write_b128 v64, v[68:71] offset:2048
        ds_write_b128 v64, v[68:71] offset:{2048 + 4*SLOT}
        ds_write_b128 v64, v[68:71] offset:{2048 + 8*SLOT}
        ds_write_b128 v64, v[68:71] offset:{2048 + 12*SLOT}
        v_lshrrev_b32 v66, 5, v1
        v_lshlrev_b32 v66, 8, v66
        v_lshl_add_u32 v66, v65, 4, v66
        v_add_u32 v66, 1024, v66
        v_add_u32 v67, -4, v65
        v_cmp_gt_u32 vcc, 8, v67
        v_mov_b32 v67, 2048
        v_mov_b32 v72, {2048 + 64}
        v_cndmask_b32 v67, v67, v72, vcc
        v_and_b32 v72, 16, v1
        v_cmp_eq_u32 vcc, 0, v72
        v_add_u32 v72, 512, v66
        v_mov_b32 v{VK}, v{VL}
        v_cndmask_b32 v{VV0}, v67, v66, vcc
        v_cndmask_b32 v{VV1}, v67, v72, vcc
        """)
        for wdw in (1, 2):
            for b in (VK, VV0, VV1): p(f"v_add_u32 v{b+wdw}, {wdw*28*SLOT}, v{b}")
        self.base(22, 6, OF, [("s13", 1024), ("s17", 65536)])

        def rd(kind, t):
            wdw, off = divmod(t, 28)
            reg = {"K": KB, "V0": V0B, "V1": V1B}[kind][t % 2]
            adr = {"K": VK, "V0": VV0, "V1": VV1}[kind] + wdw
            return f"ds_read_b128 {R('v', reg)}, v{adr} offset:{off*SLOT}"
        self.stamp()
        t = p.wait_txt(vm=("g", 0))
        p(t + " lgkmcnt(0)\ns_barrier")
        self.stamp()
        p(rd("K", 0) + "\n" + rd("V0", 0) + "\n" + rd("V1", 0) + "\n" + rd("K", 1))
        p("s_waitcnt lgkmcnt(3)")
        p(m32(SA, KB[0], QA))
        p("s_waitcnt lgkmcnt(0)")
        slots = {}
        def put(t, name, items): slots.setdefault((t, name), []).extend(items)
        for G in range(G0, 16):
            g = grp(G); t0 = 2 * (G - G0)
            put(t0, "A19", [g[0]]); put(t0, "B12", [g[1]]); put(t0 + 1, "A19", [g[2], g[3]])
        bars = [2, 4, 8, 12, 24, 48, 64]
        for a, b in zip(bars[:-1], bars[1:]):
            put(a - 2, "B12", [("BAR", [("g", x) for x in range(a, b)])])
        extra = list(extra)
        free = [(t, "B12") for t in range(1, 26, 2)] + [(t, n) for t in range(26, 62) for n in ("A19", "B12")]
        free = [f for f in free if f not in slots]
        per = -(-len(extra) // len(free)) if extra else 0
        for f in free:
            for _ in range(per):
                if extra: put(f[0], f[1], [extra.pop(0)])
        assert not extra

        def slot(t, name):
            for txt, tag in slots.get((t, name), []):
                if txt == "BAR":
                    p.wait(vm=tag); p("s_barrier")
                else:
                    p(txt, tag=tag)

        for t in range(64):
            for X in "AB":
                S, O = (SA, OA) if X == "A" else (SB, OB)
                Sp, Op = (SB, OB) if X == "A" else (SA, OA)
                tp = t if X == "B" else t - 1
                first = (t == 0 and X == "A"); last = (t == 63 and X == "B")
                e = lambda i: p(f"v_exp_f32 v{S+i}, v{S+i}")
                c = lambda j: p(f"v_cvt_pk_bf16_f32 v{(P0 if j < 4 else P1) + j % 4}, v{S+2*j}, v{S+2*j+1}")
                e(0)
                if not first: p(f"v_cvt_pk_bf16_f32 v{P1+3}, v{Sp+14}, v{Sp+15}")
                e(1); e(2)
                if not first: p(m32(Op, V1B[tp % 2], P1, Op))
                if X == "A":
                    if t < 63: p(rd("V0", t + 1))
                else:
                    p("s_waitcnt lgkmcnt(0)")
                c(0); e(3); e(4); c(1); e(5); e(6)
                if X == "A":
                    p(m32(SB, KB[t % 2], QB))
                    if t < 63: p(rd("V1", t + 1))
                elif not last:
                    p(m32(SA, KB[(t + 1) % 2], QA))
                    slot(t, "B12")
                c(2); e(7); e(8); c(3); e(9); e(10)
                p(m32(O, V0B[t % 2], P0, None if t == 0 else O))
                if X == "A": slot(t, "A19")
                elif t < 62: p(rd("K", t + 2))
                c(4); e(11); e(12); c(5); e(13); e(14); c(6); e(15)
        p(f"v_cvt_pk_bf16_f32 v{P1+3}, v{SB+14}, v{SB+15}")
        p(m32(OB, V1B[1], P1, OB))
        self.stamp()
        T = TMP
        p(f"v_pk_mul_f32 v[{T}:{T+1}], v[{OA}:{OA+1}], 0 op_sel_hi:[1,0]")
        for r in (2, 4, 6): p(f"v_pk_fma_f32 v[{T}:{T+1}], v[{OA+r}:{OA+r+1}], 0, v[{T}:{T+1}] op_sel_hi:[1,0,1]")
        p(f"v_rcp_f32 v{T+4}, v{OA+8}")
        for r in (0, 2, 4, 6): p(f"v_pk_fma_f32 v[{T}:{T+1}], v[{OB+r}:{OB+r+1}], 0, v[{T}:{T+1}] op_sel_hi:[1,0,1]")
        p(f"""
        v_min_f32 v{T+2}, v{OA+8}, v{OB+8}
        v_max_f32 v{T+3}, v{OA+8}, v{OB+8}
        v_cmp_u_f32 s[26:27], v{T}, v{T+1}
        v_cmp_gt_f32 vcc, {f2h(2.0**-30)}, v{T+2}
        s_or_b64 s[26:27], s[26:27], vcc
        v_cmp_lt_f32 vcc, {f2h(2.0**60)}, v{T+3}
        s_or_b64 s[26:27], s[26:27], vcc
        s_cbranch_scc1 {N}_FB
    {N}_PUB:
        v_rcp_f32 v{T+6}, v{OB+8}
        """)
        for O, rr, vo in ((OA, T + 4, VL), (OB, T + 6, VL + 4)):
            for r in (0, 2, 4, 6): p(f"v_pk_mul_f32 v[{O+r}:{O+r+1}], v[{O+r}:{O+r+1}], v[{rr}:{rr+1}] op_sel_hi:[1,0]")
            for j in range(4): p(f"v_cvt_pk_bf16_f32 v{O+12+j}, v{O+2*j}, v{O+2*j+1}")
            p(f"global_store_dwordx4 v{vo}, {R('v', O+12)}, s[22:23]{self.st}", tag="opub")

    def attn_fallback(self):
        p = self.p; N = self.name; T = TMP
        p(f"{N}_FB:")
        for X, Q, O in (("A", QA, OA), ("B", QB, OB)):
            p(f"""
            v_mov_b32 v{P0}, 0xff800000
            v_mov_b32 v{SB}, v{VK}
            s_mov_b32 s26, 64
        {N}_FB1{X}:
            ds_read_b128 {R('v', KB[0])}, v{SB}
            v_add_u32 v{SB}, {SLOT}, v{SB}
            s_waitcnt lgkmcnt(0)
            """)
            p(m32(SA, KB[0], Q))
            for i in range(8): p(f"v_max3_f32 v{P0}, v{SA+2*i}, v{SA+2*i+1}, v{P0}")
            p(f"""
            s_sub_u32 s26, s26, 1
            s_cmp_lg_u32 s26, 0
            s_cbranch_scc1 {N}_FB1{X}
            v_mov_b32 v{P0+1}, v{P0}
            v_permlane32_swap_b32 v{P0}, v{P0+1}
            v_max_f32 v{P0}, v{P0}, v{P0+1}
            """)
            for i in range(16): p(f"v_sub_f32 v{T+i}, 0, v{P0}\nv_mov_b32 v{O+i}, 0")
            p(f"""
            v_mov_b32 v{SB}, v{VK}
            v_mov_b32 v{SB+1}, v{VV0}
            v_mov_b32 v{SB+2}, v{VV1}
            s_mov_b32 s26, 64
        {N}_FB2{X}:
            ds_read_b128 {R('v', KB[0])}, v{SB}
            ds_read_b128 {R('v', V0B[0])}, v{SB+1}
            ds_read_b128 {R('v', V1B[0])}, v{SB+2}
            v_add_u32 v{SB}, {SLOT}, v{SB}
            v_add_u32 v{SB+1}, {SLOT}, v{SB+1}
            v_add_u32 v{SB+2}, {SLOT}, v{SB+2}
            s_waitcnt lgkmcnt(0)
            """)
            p(m32(SA, KB[0], Q, T))
            for i in range(16): p(f"v_exp_f32 v{SA+i}, v{SA+i}")
            for j in range(8): p(f"v_cvt_pk_bf16_f32 v{P0+j}, v{SA+2*j}, v{SA+2*j+1}")
            p(m32(O, V0B[0], P0, O)); p(m32(O, V1B[0], P1, O))
            p(f"s_sub_u32 s26, s26, 1\ns_cmp_lg_u32 s26, 0\ns_cbranch_scc1 {N}_FB2{X}")
        p(f"v_rcp_f32 v{T+4}, v{OA+8}\ns_nop 7\ns_branch {N}_PUB")

    def post_setup(self):
        p = self.p
        p(f"""
        v_and_b32 v20, 31, v1
        v_lshrrev_b32 v21, 5, v1
        v_mul_u32_u24 v20, 272, v20
        v_lshl_add_u32 v20, v21, 4, v20
        s_mul_i32 s17, s3, 8704
        v_add_u32 v{VTW}, s17, v20
        v_lshrrev_b32 v20, 3, v1             ; tt
        v_and_b32 v21, 7, v1                 ; fc
        v_mul_u32_u24 v22, 272, v20
        v_lshl_add_u32 v22, v21, 5, v22
        s_mul_i32 s17, s3, {8*272}
        v_add_u32 v{VTR}, s17, v22
        v_lshlrev_b32 v{VSO}, 4, v20
        v_lshl_add_u32 v{VHO}, v21, 8, v{VSO}
        v_add_u32 v{VHO+1}, 32768, v{VHO}
        v_lshlrev_b32 v22, 10, v20
        v_lshl_add_u32 v{VXO}, v21, 4, v22
        v_add_u32 v{VXO+1}, 32768, v{VXO}
        s_lshl_b32 s17, s3, 12
        s_add_u32 s17, s17, {HL}
        v_add_u32 v{VHW}, s17, v{VL}
        v_add_u32 v{VHW+1}, {HL}, v{VL}
        s_lshr_b32 s28, s3, 1
        s_and_b32 s29, s3, 1
        s_lshr_b32 s30, s15, 1
        s_and_b32 s31, s15, 1
        s_mov_b32 s33, 0x3f803f80
        """)
        self.base(34, 6, OF + 4096, [("s16", 65536), ("s3", 8192)])
        self.base(36, 4, 0, [("s16", 65536), ("s3", 8192), ("s15", 128)])
        self.base(38, 8, 0, [("s16", 65536), ("s3", 8192), ("s15", 128)])
        self.base(40, 6, HF, [("s16", 65536), ("s28", 16384), ("s29", 128), ("s15", 2048)])
        self.base(42, 6, ST, [("s16", 4096), ("s30", 1024), ("s31", 8), ("s3", 128)])
        self.base(44, 6, HF, [("s16", 65536), ("s3", 4096)])
        self.base(46, 6, ST, [("s16", 4096)])
        self.base(48, 6, GF, [("s16", 2 * 90112), ("s3", 22528), ("s15", 1024)])
        p("s_add_u32 s50, s48, 90112\ns_addc_u32 s51, s49, 0")
        self.base(52, 6, GF + 4096, [("s16", 2 * 90112), ("s3", 22528)])
        p("s_add_u32 s54, s52, 90112\ns_addc_u32 s55, s53, 0")

    def wbases(self):
        p = self.p
        self.base(56, 6, WOF + 4096, [("s15", 65536), ("s3", 16384)])
        self.base(58, 6, W1F + 4096, [("s15", 65536), ("s3", 16384)])
        p(f"s_add_u32 s60, s58, {32*16384}\ns_addc_u32 s61, s59, 0\ns_add_u32 s62, s58, {64*16384}\ns_addc_u32 s63, s59, 0")
        self.base(64, 6, W2F + 4096, [("s15", 4 * 45056), ("s3", 45056)])

    def wo_loads(self): return [self.frag("a", 4 * q, 56, q, ("wo", q // 2)) for q in range(16)]
    def w1_loads(self): return [self.frag("a", 64 + 64 * k + 4 * q, 58 + 2 * k, q, ("w1", k)) for k in range(3) for q in range(16)]

    @staticmethod
    def w2reg(q): return ("v", W2V + 4 * q) if q < 28 else ("a", 4 * (q - 28))
    def w2_loads(self, lo, hi): return [self.frag(*self.w2reg(q), 64, q, ("w2", q // 2)) for q in range(lo, hi)]

    def twrites(self, rt, acc):
        return [f"ds_write_b128 v{VTW}, {R('v', acc + 16*ct + 4*q)} offset:{TB + rt*TSTR + ct*128 + q*32}" for ct in range(2) for q in range(4)]

    def treads(self, rt, dst):
        for w in range(4):
            for i in range(2):
                self.p(f"ds_read_b128 {R('v', dst + 8*w + 4*i)}, v{VTR} offset:{TB + rt*TSTR + w*8704 + 16*i}", tag=("tr", rt, w))

    def tsum(self, rt, P, res, dst):
        p = self.p; U = 24
        for j in range(4):
            p(f"v_lshlrev_b32 v{U+2*j}, 16, v{res+j}\nv_and_b32 v{U+2*j+1}, 0xffff0000, v{res+j}")
        p.wait(lg=("tr", rt, 1))
        for r in range(0, 8, 2): p(f"v_pk_add_f32 v[{P+r}:{P+r+1}], v[{P+r}:{P+r+1}], v[{P+8+r}:{P+9+r}]")
        p.wait(lg=("tr", rt, 2))
        for r in range(0, 8, 2): p(f"v_pk_add_f32 v[{U+r}:{U+r+1}], v[{U+r}:{U+r+1}], v[{P+16+r}:{P+17+r}]")
        p.wait(lg=("tr", rt, 3))
        for r in range(0, 8, 2): p(f"v_pk_add_f32 v[{P+r}:{P+r+1}], v[{P+r}:{P+r+1}], v[{P+24+r}:{P+25+r}]")
        for r in range(0, 8, 2): p(f"v_pk_add_f32 v[{P+r}:{P+r+1}], v[{P+r}:{P+r+1}], v[{U+r}:{U+r+1}]")
        for j in range(4): p(f"v_cvt_pk_bf16_f32 v{dst+j}, v{P+2*j}, v{P+2*j+1}")

    def splitk(self, nk, areg, atag, breg, btag, epi, skip_last=False, mid=()):
        p = self.p
        ACC = (32, 64)
        mid = list(mid)
        for rt in range(2):
            wr = self.twrites(0, ACC[0]) if rt else []
            for k in range(nk):
                lab = None
                if skip_last and k == nk - 1:
                    lab = p.label(f"{self.name}_SK{rt}")
                    p(f"s_cmp_ge_u32 s3, 2\ns_cbranch_scc1 {lab}")
                p.wait(vm=[atag(k), btag(rt, k)])
                for ct in range(2):
                    ka, ra = areg(k, ct); kb, rb = breg(rt, k)
                    d = ACC[rt] + 16 * ct
                    p(m32(d, ra, rb, None if k == 0 else d, ka, kb))
                    if wr and k >= 3 and not lab: p(wr.pop(0), tag="tw0")
                    elif mid and rt == 1 and not lab and k >= 1:
                        t, tag = mid.pop(0); p(t, tag=tag)
                if lab: p(f"{lab}:")
            assert not wr
        for t, tag in mid: p(t, tag=tag)
        self.stamp()
        p("s_waitcnt lgkmcnt(0)\ns_barrier")
        self.treads(0, ACC[0])
        for t in self.twrites(1, ACC[1]): p(t, tag="tw1")
        epi(0, ACC[0])
        p("s_waitcnt lgkmcnt(0)\ns_barrier")
        self.treads(1, ACC[1])
        epi(1, ACC[1])

    def wo(self, mid=()):
        p = self.p
        B = (64, 96)
        for rt in range(2):
            for k in range(8):
                p(f"global_load_dwordx4 {R('v', B[rt]+4*k)}, v{VL+4*rt}, s[34:35] offset:{k*1024-4096}{self.ld}", tag=("o", rt, k))
        for rt in range(2):
            p(f"global_load_dwordx4 {R('v', XR+4*rt)}, v{VXO+rt}, s[36:37]", tag=("x", rt))

        def epi(rt, P):
            p.wait(vm=("x", rt))
            h = HR + 4 * rt
            self.tsum(rt, P, XR + 4 * rt, h)
            p(f"global_store_dwordx4 v{VHO+rt}, {R('v', h)}, s[40:41]{self.st}", tag="hpub")
            p("v_mov_b32 v20, 0\nv_mov_b32 v21, 0")
            for j in range(4): p(f"v_dot2c_f32_bf16 v20, s33, v{h+j}\nv_dot2c_f32_bf16 v21, v{h+j}, v{h+j}")
            for d in ("quad_perm:[1,0,3,2]", "quad_perm:[2,3,0,1]", "row_half_mirror"):
                p(f"v_add_f32_dpp v20, v20, v20 {d} row_mask:0xf bank_mask:0xf\nv_add_f32_dpp v21, v21, v21 {d} row_mask:0xf bank_mask:0xf")
            p(f"""
            s_mov_b32 exec_lo, 0x01010101
            s_mov_b32 exec_hi, 0x01010101
            global_store_dwordx2 v{VSO}, v[20:21], s[42:43] offset:{512*rt}{self.st}
            s_mov_b64 exec, -1
            """, tag="hpub")
        self.splitk(8, lambda k, ct: ("a", 8 * k + 4 * ct), lambda k: ("wo", k),
                    lambda rt, k: ("v", B[rt] + 4 * k), lambda rt, k: ("o", rt, k), epi, mid=mid)

    def w1(self):
        p = self.p; N = self.name
        HS = 32
        SS = 96
        CS = 112
        RS, NM = 20, 24
        BR = 124
        ring = (124, 128, 132, 28)
        for a in range(4):
            for i in range(4):
                p(f"global_load_dwordx4 {R('v', HS+16*a+4*i)}, v{VL+2*a}, s[44:45] offset:{i*1024}{self.ld}", tag=("h", a))
            if a == 0:
                for jp in range(4):
                    p(f"global_load_dwordx4 {R('v', SS+4*jp)}, v{VL}, s[46:47] offset:{jp*1024}{self.ld}", tag="st")
        for j in range(4): p(f"v_mov_b32 v{28+j}, s33")
        p.wait(vm=[("w1", k) for k in range(3)])
        for ks in range(16):
            for k in range(3):
                p(m16(CS + 4 * k, 64 + 64 * k + 4 * ks, 28, None if ks == 0 else CS + 4 * k, "a"))
        self.stamp()

        def hwrite(a):
            p.wait(vm=("h", a))
            for i in range(4):
                p(f"ds_write_b128 v{VHW}, {R('v', HS+16*a+4*i)} offset:{a*16384 + i*1024}", tag=("hw", a))
        hwrite(0)
        p("s_waitcnt lgkmcnt(0)\ns_barrier")
        self.stamp()

        def brd(s):
            return f"ds_read_b128 {R('v', ring[s % 4])}, v{VHW+1} offset:{s*1024}"
        for s in range(3): p(brd(s), tag=("b", s))
        p.wait(vm="st")
        for jp in range(4): p(f"v_pk_add_f32 v[{SS+4*jp}:{SS+4*jp+1}], v[{SS+4*jp}:{SS+4*jp+1}], v[{SS+4*jp+2}:{SS+4*jp+3}]")
        p(f"""
        v_pk_add_f32 v[{SS}:{SS+1}], v[{SS}:{SS+1}], v[{SS+4}:{SS+5}]
        v_pk_add_f32 v[{SS+8}:{SS+9}], v[{SS+8}:{SS+9}], v[{SS+12}:{SS+13}]
        v_pk_add_f32 v[{SS}:{SS+1}], v[{SS}:{SS+1}], v[{SS+8}:{SS+9}]
        v_mul_f32 v{SS}, {f2h(-1.0/512)}, v{SS}
        v_mul_f32 v{SS+1}, {f2h(1.0/512)}, v{SS+1}
        v_fma_f32 v{SS+1}, -v{SS}, v{SS}, v{SS+1}
        v_max_f32 v{SS+1}, 0, v{SS+1}
        v_add_f32 v{SS+1}, {f2h(1e-5)}, v{SS+1}
        v_rsq_f32 v{SS+1}, v{SS+1}
        s_mov_b32 s32, {f2h(-LOG2E)}
        v_mul_f32 v{RS}, s32, v{SS+1}
        v_mul_f32 v{NM}, v{SS}, v{RS}
        v_mov_b32 v{RS+2}, v{RS}
        v_mov_b32 v{NM+2}, v{NM}
        v_permlane32_swap_b32 v{RS}, v{RS+2}
        v_permlane32_swap_b32 v{NM}, v{NM+2}
        v_mov_b32 v{RS+1}, v{RS}
        v_mov_b32 v{RS+3}, v{RS+2}
        v_mov_b32 v{NM+1}, v{NM}
        v_mov_b32 v{NM+3}, v{NM+2}
        v_permlane16_swap_b32 v{RS}, v{RS+1}
        v_permlane16_swap_b32 v{RS+2}, v{RS+3}
        v_permlane16_swap_b32 v{NM}, v{NM+1}
        v_permlane16_swap_b32 v{NM+2}, v{NM+3}
        """)
        ACC = (96, 32)
        GP = 48
        TT = 108

        def sel(base, a):
            lo = base + (a & ~1)
            return f"v[{lo}:{lo+1}]", a & 1

        def epi(a):
            out = []
            rs, b = sel(RS, a); nm, _ = sel(NM, a)
            for k in range(3):
                acc = ACC[a % 2] + 4 * k
                for h in range(2):
                    z = acc + 2 * h; t = TT + 2 * h
                    out.append(f"v_pk_mul_f32 v[{t}:{t+1}], v[{CS+4*k+2*h}:{CS+4*k+2*h+1}], {nm} op_sel:[0,{b}] op_sel_hi:[1,{b}]")
                    out.append(f"v_pk_fma_f32 v[{z}:{z+1}], v[{z}:{z+1}], {rs}, v[{t}:{t+1}] op_sel:[0,{b},0] op_sel_hi:[1,{b},1]")
                for h in range(2):
                    z = acc + 2 * h; t = TT + 2 * h
                    out += [f"v_exp_f32 v{t}, v{z}", f"v_exp_f32 v{t+1}, v{z+1}"]
                for h in range(2):
                    t = TT + 2 * h
                    out.append(f"v_pk_fma_f32 v[{t}:{t+1}], v[{t}:{t+1}], s[32:33], s[32:33] op_sel_hi:[1,0,0]")
                for i in range(4): out.append(f"v_rcp_f32 v{TT+i}, v{TT+i}")
                for h in range(2):
                    z = acc + 2 * h; t = TT + 2 * h
                    out.append(f"v_pk_mul_f32 v[{z}:{z+1}], v[{z}:{z+1}], v[{t}:{t+1}]")
                for h in range(2):
                    out.append(f"v_cvt_pk_bf16_f32 v{GP+4*k+2*(a%2)+h}, v{acc+2*h}, v{acc+2*h+1}")
            if a % 2:
                for k in range(3):
                    g = GP + 4 * k
                    out += [f"v_permlane16_swap_b32 v{g}, v{g+2}", f"v_permlane16_swap_b32 v{g+1}, v{g+3}"]
                sb = 48 + 2 * (a // 2)
                for k in range(2):
                    out.append(f"global_store_dwordx4 v{VL+k}, {R('v', GP+4*k)}, s[{sb}:{sb+1}]{self.st}")
                lab = f"{N}_G{a}"
                out.append(f"s_cmp_lt_u32 s17, 22\ns_cbranch_scc0 {lab}\nglobal_store_dwordx4 v{VL+2}, {R('v', GP+8)}, s[{sb}:{sb+1}]{self.st}\n{lab}:")
            return out
        p("s_lshl_b32 s17, s15, 2\ns_add_u32 s17, s17, s3")
        pend = []
        for a in range(4):
            for ks in range(16):
                s = 16 * a + ks
                if a < 3 and ks == 6: hwrite(a + 1)
                if a < 3 and ks == 12:
                    p.wait(lg=("hw", a + 1)); p("s_barrier")
                p.wait(lg=("b", s))
                for k in range(3):
                    d = ACC[a % 2] + 4 * k
                    p(m16(d, 64 + 64 * k + 4 * ks, ring[s % 4], None if ks == 0 else d, "a"))
                    if k == 0 and s + 3 < 64: p(brd(s + 3), tag=("b", s + 3))
                    elif pend and ks >= 2:
                        n = 2
                        while pend and n > 0:
                            t = pend.pop(0); p(t, tag="gpub")
                            n -= 2 if t.startswith(("v_exp", "v_rcp")) else 1
            for t in pend: p(t, tag="gpub")
            pend = epi(a)
        self.stamp()
        for t in pend: p(t, tag="gpub")

    def w2(self, wl=()):
        p = self.p
        wl = list(wl)
        loads = []
        for rt in range(2):
            for n in range(22):
                loads.append(self.frag("a", 64 + 4 * (22 * rt + n), 52 + 2 * rt, n, ("gf", rt, n), self.ld))
        if wl:
            for n in range(22):
                for t, tag in (wl[2 * n], wl[2 * n + 1], loads[n]): p(t, tag=tag)
                if n == 18: p.wait(vm=("gf", 0, 4))
            p.wait(vm=("gf", 0, 16))
            for t, tag in loads[22:]: p(t, tag=tag)
        else:
            for t, tag in loads: p(t, tag=tag)

        def epi(rt, P):
            self.tsum(rt, P, HR + 4 * rt, XR + 4 * rt)
            p(f"global_store_dwordx4 v{VXO+rt}, {R('v', XR+4*rt)}, s[38:39]")
        self.splitk(22, lambda k, ct: self.w2reg(2 * k + ct), lambda k: ("w2", k),
                    lambda rt, k: ("a", 64 + 4 * (22 * rt + k)), lambda rt, k: ("gf", rt, k), epi, skip_last=True)


def gen(opt, prof, upto):
    out = []
    k = K2("att", opt, prof, 1); k.prologue(); k.attn(); k.finish(); k.attn_fallback()
    out.append(("att_kernel", k.p, ATT_LDS, 256))
    if upto >= 3:
        k = K2("wo", opt, prof, 2); k.prologue(); k.wbases()
        for t, tag in k.wo_loads(): k.p(t, tag=tag)
        k.post_setup(); k.stamp(); k.wo(); k.finish()
        out.append(("wo_kernel", k.p, 2 * TSTR, 256))
    if upto >= 4:
        k = K2("w1", opt, prof, 3); k.prologue(); k.wbases()
        l = k.w1_loads()
        for t, tag in l[:40]: k.p(t, tag=tag)
        k.post_setup()
        k.p("s_waitcnt vmcnt(30)")
        for t, tag in l[40:]: k.p(t, tag=tag)
        k.stamp(); k.w1(); k.finish()
        out.append(("w1_kernel", k.p, HL + 65536, 256))
    if upto >= 5:
        k = K2("w2", opt, prof, 4); k.prologue(); k.wbases(); k.post_setup()
        for rt in range(2):
            k.p(f"global_load_dwordx4 {R('v', HR+4*rt)}, v{VHO+rt}, s[40:41]", tag=("w2", 0))
        k.stamp(); k.w2(k.w2_loads(0, 44)); k.finish()
        out.append(("w2_kernel", k.p, 2 * TSTR, 256))
    return out
```

```python
import struct
MB = 1 << 20
QF = 0
KV = 2 * MB
WOF = 6 * MB
W1F = 7 * MB
W2F = 9 * MB
OF = 11 * MB
HF = 13 * MB
ST = 15 * MB
GF = 16 * MB
PROF = 24 * MB
WS_USED = 32 * MB

def f2h(x):
    return "0x%08x" % struct.unpack("<I", struct.pack("<f", x))[0]
```

```python
import sys, os
sys.path.insert(0, os.path.dirname(__file__))
from asmlib import *
import k1

HEADER = open("sequential_preLN__mha_block__dense_activation_silu__prompt.s.ref").read().split("; Override launch")[0]

def build(kernels, path, verbose=False):
    s = HEADER
    for name, prog, lds, grid in kernels:
        s += f"; @launch kernel={name} grid=({grid},1,1) block=(256,1,1) lds={lds}\n"
    s += '.amdgcn_target "amdgcn-amd-amdhsa--gfx950"\n.text\n'
    for name, prog, lds, grid in kernels:
        n = prog.fix_hazards(verbose)
        errs = prog.check_waits()
        print(f"{name}: {len(prog.ins)} lines, nops inserted {n}, regs {prog.maxregs()}, lds {lds}", file=sys.stderr)
        for e in errs[:30]: print("  WAIT:", e, file=sys.stderr)
        s += kernel_text(name, prog)
    s += '.section .rodata,"a"\n'
    for name, prog, lds, grid in kernels:
        s += descriptor(name, prog)
    open(path, "w").write(s)

if __name__ == "__main__":
    import argparse
    ap = argparse.ArgumentParser()
    ap.add_argument("-o", default="cur.s")
    ap.add_argument("--prof", action="store_true")
    ap.add_argument("-v", action="store_true")
    ap.add_argument("--upto", type=int, default=99)
    ap.add_argument("--opt", default="")
    a = ap.parse_args()
    opt = dict(kv.split("=") for kv in a.opt.split(",") if kv)
    opt = {k: int(v) for k, v in opt.items()}
    ks = []
    p, lds = k1.gen_k1(D=opt.get("D", 3), NS=opt.get("NS", 4), prof=a.prof); ks.append(("k1_kernel", p, lds, 256))
    if a.upto >= 2:
        import k2
        ks += k2.gen(opt, a.prof, a.upto)
    build(ks, a.o, a.v)
```

```python
from asmlib import Prog
from layout import *


def mfma32(d, a, b, c=None, ka="v", kb="v"):
    cc = f"v[{c}:{c+15}]" if c is not None else "0"
    return f"v_mfma_f32_32x32x16_bf16 v[{d}:{d+15}], {ka}[{a}:{a+3}], {kb}[{b}:{b+3}], {cc}"


def gen_k1(D=3, NS=4, prof=False):
    p = Prog()
    XL, WL, RL, S0 = 0, 32768, 131072, 147456
    ACQ, ACK, ACV = 16, 32, 48
    FB = (64, 80)
    SX, SXX, CQ, CK, CV = 96, 97, 98, 99, 100
    RD, RA = 104, 120
    vX = (8, 9, 10, 11); vW = (12, 13)
    p(f"""
    s_cmp_ge_u32 s2, 256
    s_cbranch_scc1 K1_END
    s_load_dwordx4 s[4:7], s[0:1], 0
    s_load_dwordx2 s[8:9], s[0:1], 16
    s_load_dwordx4 s[12:15], s[0:1], 32
    s_load_dwordx2 s[16:17], s[0:1], 64
    """)
    if prof: p("s_memtime s[70:71]\ns_memrealtime s[98:99]")
    p(f"""
    v_lshrrev_b32 v2, 6, v0
    v_and_b32 v1, 63, v0
    v_readfirstlane_b32 s3, v2
    s_and_b32 s33, s2, 7
    s_lshr_b32 s34, s2, 3
    s_lshr_b32 s18, s33, 1
    s_lshl_b32 s18, s18, 3
    s_lshr_b32 s35, s34, 2
    s_add_u32 s18, s18, s35
    s_and_b32 s19, s33, 1
    s_lshl_b32 s19, s19, 2
    s_and_b32 s35, s34, 3
    s_add_u32 s19, s19, s35
    s_and_b32 s36, s3, 1             ; rt
    s_lshr_b32 s37, s3, 1            ; ct
    v_lshrrev_b32 v4, 3, v1          ; l/8
    v_and_b32 v5, 7, v1              ; l%8
    s_lshl_b32 s35, s3, 3
    v_add_u32 v6, s35, v4            ; row = 8w + l/8
    v_lshrrev_b32 v7, 1, v6
    v_and_b32 v7, 7, v7
    v_xor_b32 v7, v7, v5
    v_lshlrev_b32 v7, 4, v7
    v_lshl_add_u32 v2, v6, 10, v7    ; voffX
    v_lshrrev_b32 v7, 1, v4
    v_and_b32 v7, 1, v7
    v_lshlrev_b32 v7, 2, v7
    v_xor_b32 v7, v7, v5
    v_lshlrev_b32 v7, 4, v7
    v_mul_u32_u24 v3, 3072, v6
    v_add_u32 v3, v3, v7
    s_lshl_b32 s35, s19, 7
    v_add_u32 v3, s35, v3            ; voffW
    s_waitcnt lgkmcnt(0)
    s_lshl_b32 s35, s18, 16
    s_add_u32 s20, s4, s35
    s_addc_u32 s21, s5, 0
    s_mov_b32 s22, 65536
    s_mov_b32 s23, 0x20000
    s_mov_b32 s24, s6
    s_mov_b32 s25, s7
    s_mov_b32 s26, {512*3072}
    s_mov_b32 s27, 0x20000
    s_lshl_b32 s38, s3, 10
    s_mul_i32 s39, s3, 3072
    s_add_u32 s39, s39, {WL}
    """)

    def dma_list(c):
        slot = c % NS
        out = []
        for half in (0, 1):
            out.append([f"s_add_u32 m0, s39, {slot*24576 + half*4*3072}",
                        f"s_mov_b32 s40, {c*64*3072 + half*32*3072}",
                        "buffer_load_dwordx4 v3, s[24:27], s40 offen lds"])
            out.append(["buffer_load_dwordx4 v3, s[24:27], s40 offen offset:1024 lds"])
            out.append(["buffer_load_dwordx4 v3, s[24:27], s40 offen offset:2048 lds"])
            out.append([f"s_add_u32 m0, s38, {XL + slot*8192 + half*4096}",
                        f"s_mov_b32 s41, {c*128 + half*32768}",
                        "buffer_load_dwordx4 v2, s[20:23], s41 offen lds"])
        return out

    def emit_dma(grp, c):
        for t in grp: p(t, tag=("c", c))

    for c in range(D):
        for g in dma_list(c): emit_dma(g, c)

    p(f"""
    s_lshl_b32 s42, s2, 2
    s_add_u32 s42, s42, s3           ; gw
    s_mov_b32 s44, s16
    s_mov_b32 s45, s17
    s_mov_b32 s46, {WS_USED}
    s_mov_b32 s47, 0x20000
    s_mov_b32 s48, s16
    s_mov_b32 s49, s17
    s_mov_b32 s50, {WS_USED}
    s_mov_b32 s51, 0x20000
    s_mov_b32 s31, 0x20000
    v_and_b32 v14, 15, v1
    v_lshrrev_b32 v15, 4, v1         ; l/16
    v_lshrrev_b32 v101, 2, v14       ; r
    v_and_b32 v102, 3, v1            ; c
    s_cmp_lt_u32 s42, 352
    s_cbranch_scc0 K1_ROLE_N512
    ; W1 role
    s_and_b32 s52, s42, 15           ; ks
    s_lshr_b32 s53, s42, 4           ; cbk
    s_mov_b32 s28, s12
    s_mov_b32 s29, s13
    s_mov_b32 s30, {512*2752}
    s_mul_i32 s54, s52, {32*2752}
    s_lshl_b32 s35, s53, 7
    s_add_u32 s54, s54, s35
    s_mov_b32 s55, {8*2752}
    s_lshl_b32 s56, s53, 16
    s_lshl_b32 s35, s52, 10
    s_add_u32 s56, s56, s35
    s_add_u32 s56, s56, {W1F}
    s_mov_b32 s57, 16384
    s_mov_b32 s58, 32768
    s_mov_b32 s59, 32
    s_mov_b32 s60, 512
    v_mul_u32_u24 v103, 2752, v4
    v_lshl_add_u32 v103, v5, 4, v103
    v_lshlrev_b32 v15, 10, v15
    v_lshl_add_u32 v15, v101, 7, v15
    v_lshl_add_u32 v{RA}, v102, 3, v15
    s_branch K1_ROLE_DONE
K1_ROLE_N512:
    s_sub_u32 s35, s42, 352
    s_and_b32 s53, s35, 3
    s_lshl_b32 s53, s53, 1           ; j0
    s_lshr_b32 s52, s35, 2
    s_cmp_lt_u32 s52, 32
    s_cbranch_scc0 K1_ROLE_W2
    s_mov_b32 s28, s8
    s_mov_b32 s29, s9
    s_mov_b32 s30, {512*1024}
    s_lshl_b32 s56, s53, 16
    s_lshl_b32 s35, s52, 11
    s_add_u32 s56, s56, s35
    s_add_u32 s56, s56, {WOF}
    s_mov_b32 s58, 65536
    s_branch K1_ROLE_N512B
K1_ROLE_W2:
    s_sub_u32 s52, s52, 32
    s_mov_b32 s28, s14
    s_mov_b32 s29, s15
    s_cmp_lt_u32 s52, 86
    s_cselect_b32 s30, {1376*1024}, 0
    s_cselect_b32 s50, {WS_USED}, 0
    s_min_u32 s52, s52, 85
    s_lshl_b32 s56, s53, 2
    s_and_b32 s35, s52, 3
    s_add_u32 s56, s56, s35
    s_mul_i32 s56, s56, 22
    s_lshr_b32 s35, s52, 2
    s_add_u32 s56, s56, s35
    s_lshl_b32 s56, s56, 11
    s_add_u32 s56, s56, {W2F}
    s_mov_b32 s58, {4*22*2048}
K1_ROLE_N512B:
    s_lshl_b32 s54, s52, 14
    s_lshl_b32 s35, s53, 7
    s_add_u32 s54, s54, s35
    s_mov_b32 s55, 4096
    s_mov_b32 s57, 1024
    s_mov_b32 s59, 64
    s_mov_b32 s60, 1024
    v_lshlrev_b32 v103, 10, v15
    v_lshl_add_u32 v103, v14, 4, v103
    v_lshrrev_b32 v{RA}, 1, v15
    v_lshlrev_b32 v{RA}, 11, v{RA}
    v_and_b32 v15, 1, v15
    v_lshl_add_u32 v{RA}, v15, 5, v{RA}
    v_lshl_add_u32 v{RA}, v101, 8, v{RA}
    v_lshl_add_u32 v{RA}, v102, 3, v{RA}
K1_ROLE_DONE:
    s_lshl_b32 s35, s3, 12
    s_add_u32 s35, s35, {RL}
    v_add_u32 v{RA}, s35, v{RA}
    """)
    for i in range(4):
        p(f"s_add_u32 m0, s35, {i*1024}")
        if i: p("s_add_u32 s54, s54, s55")
        p("buffer_load_dwordx4 v103, s[28:31], s54 offen lds", tag="rl")
    p(f"""
    v_add_u32 v{RA+1}, s60, v{RA}
    v_add_u32 v{RA+2}, s59, v{RA}
    v_add_u32 v{RA+3}, s59, v{RA+1}
    v_add_u32 v{RA+4}, s59, v{RA+2}
    v_add_u32 v{RA+5}, s59, v{RA+3}
    v_add_u32 v{RA+6}, s59, v{RA+4}
    v_add_u32 v{RA+7}, s59, v{RA+5}
    v_and_b32 v14, 31, v1            ; n
    v_lshrrev_b32 v15, 5, v1         ; hh
    v_lshrrev_b32 v4, 1, v14
    v_and_b32 v4, 7, v4
    v_xor_b32 v4, v4, v15            ; hh ^ f
    s_lshl_b32 s35, s36, 12          ; rt*32*128
    v_lshl_add_u32 v5, v14, 7, s35
    """)
    for ks in range(4):
        p(f"v_xor_b32 v6, {2*ks}, v4\nv_lshl_add_u32 v{vX[ks]}, v6, 4, v5")
    p(f"""
    v_mul_u32_u24 v5, 3072, v15
    v_lshl_add_u32 v5, v101, 7, v5   ; + r*128
    v_bfe_u32 v6, v1, 3, 1
    v_xor_b32 v6, s37, v6
    v_lshl_add_u32 v5, v6, 6, v5
    v_bfe_u32 v6, v1, 4, 1
    v_lshl_add_u32 v5, v6, 5, v5
    v_lshl_add_u32 v5, v102, 3, v5
    v_add_u32 v{vW[0]}, {WL}, v5
    v_add_u32 v{vW[1]}, {WL + 49152}, v5
    s_mov_b32 s61, 0x3f803f80
    v_mov_b32 v{SX}, 0
    v_mov_b32 v{SXX}, 0
    v_mov_b32 v{CQ}, 0
    v_mov_b32 v{CK}, 0
    v_mov_b32 v{CV}, 0
    """)

    def rd(s, part):
        c, ks = divmod(s, 4); slot = c % NS; b = FB[s % 2]
        out = []
        if part == 0:
            out.append(f"ds_read_b128 v[{b}:{b+3}], v{vX[ks]} offset:{XL + slot*8192}")
        base = vW[slot // 2]; off = (slot % 2) * 24576 + ks * 6144 + part * 1024
        for i in range(2):
            out.append(f"ds_read_b64_tr_b16 v[{b+4+4*part+2*i}:{b+5+4*part+2*i}], v{base} offset:{off + i*512}")
        return out

    def emit_rd(s, part):
        for t in rd(s, part): p(t, tag=("r", s, part))

    if prof: p("s_memtime s[72:73]")
    p.wait(vm=("c", 0))
    p("s_barrier")
    if prof: p("s_memtime s[74:75]\ns_waitcnt lgkmcnt(0)")
    for part in range(3): emit_rd(0, part)
    pend = []
    for s in range(32):
        c, ks = divmod(s, 4); b = FB[s % 2]
        first = (s == 0)
        if ks == 3 and c < 7:
            t = p.wait_txt(vm=("c", c + 1))
            p((t + " lgkmcnt(0)") if t else "s_waitcnt lgkmcnt(0)")
            p("s_barrier")
            if c + D < 8 and NS == D: pend += [(g, c + D) for g in dma_list(c + D)]
        if ks == 0 and NS > D and c + D < 8:
            pend += [(g, c + D) for g in dma_list(c + D)]
        accs = [(ACQ, b + 4, b), (ACK, b + 8, b), (ACV, b, b + 12)]
        for part in range(3):
            p.wait(lg=("r", s, part))
            d, a, bb = accs[part]
            p(mfma32(d, a, bb, None if first else d))
            if s < 31: emit_rd(s + 1, part)
            if pend:
                g, cc = pend.pop(0); emit_dma(g, cc)
        lab = p.label()
        p(f"s_cmp_eq_u32 s37, {s % 2}\ns_cbranch_scc0 {lab}")
        for j in range(4):
            p(f"v_dot2c_f32_bf16 v{SX}, s61, v{b+j}\nv_dot2c_f32_bf16 v{SXX}, v{b+j}, v{b+j}")
        p(f"{lab}:")
        lab = p.label()
        p(f"s_cmp_eq_u32 s36, {s % 2}\ns_cbranch_scc0 {lab}")
        for j in range(4):
            p(f"v_dot2c_f32_bf16 v{CQ}, s61, v{b+4+j}\nv_dot2c_f32_bf16 v{CK}, s61, v{b+8+j}\nv_dot2c_f32_bf16 v{CV}, s61, v{b+12+j}")
        p(f"{lab}:")
        if s == 4 * D:
            for q in range(4):
                for i in range(2):
                    p(f"ds_read_b64_tr_b16 v[{RD+4*q+2*i}:{RD+4*q+2*i+1}], v{RA+2*q+i}", tag="rlr")
        if s == 4 * D + 1:
            p("v_lshlrev_b32 v103, 4, v1")
            p.wait(lg="rlr")
            for q in range(4):
                if q == 1: p("s_add_u32 s62, s56, s57")
                if q == 2: p("s_add_u32 s56, s56, s58")
                if q == 3: p("s_add_u32 s62, s56, s57")
                p(f"buffer_store_dwordx4 v[{RD+4*q}:{RD+4*q+3}], v103, s[48:51], {'s62' if q % 2 else 's56'} offen", tag="rls")
    assert not pend
    if prof: p("s_memtime s[76:77]\ns_waitcnt lgkmcnt(0)")
    T = 128
    p(f"""
    s_lshl_b32 s35, s36, 10
    s_lshl_b32 s40, s37, 4
    s_add_u32 s40, s40, s35
    s_add_u32 s40, s40, {S0}
    v_lshlrev_b32 v4, 5, v14
    v_lshl_add_u32 v5, v15, 3, v4
    v_add_u32 v5, s40, v5
    s_add_u32 s35, s35, {S0}
    v_add_u32 v4, s35, v4
    s_lshl_b32 s40, s37, 9
    s_add_u32 s40, s40, {S0 + 2048}
    v_lshl_add_u32 v6, v14, 4, s40
    s_lshl_b32 s41, s36, 3
    v_lshl_add_u32 v7, v15, 2, s41
    v_add_u32 v7, v6, v7
    ds_write_b64 v5, v[{SX}:{SXX}]
    ds_write_b32 v7, v{CQ}
    ds_write_b32 v7, v{CK} offset:1024
    ds_write_b32 v7, v{CV} offset:2048
    s_lshl_b32 s40, s3, 9
    s_add_u32 s40, s40, {S0 + 5120}
    v_lshl_add_u32 v8, v14, 2, s40
    v_lshl_add_u32 v9, v15, 4, s40
    s_waitcnt lgkmcnt(0)
    s_barrier
    ds_read_b128 v[64:67], v4
    ds_read_b128 v[68:71], v4 offset:16
    ds_read_b128 v[72:75], v6
    ds_read_b128 v[76:79], v6 offset:1024
    ds_read_b128 v[80:83], v6 offset:2048
    s_lshl_b32 s40, s19, 2
    s_lshl_b32 s41, s37, 1
    s_add_u32 s40, s40, s41          ; head0
    s_lshl_b32 s40, s40, 6
    s_lshl_b32 s41, s18, 1
    s_add_u32 s41, s41, s36          ; qt
    s_add_u32 s40, s40, s41
    s_lshl_b32 s52, s40, 10
    s_add_u32 s52, s52, {QF}
    s_add_u32 s53, s52, 65536
    s_lshl_b32 s54, s40, 11
    s_add_u32 s54, s54, {KV}
    s_add_u32 s55, s54, 131072
    v_lshlrev_b32 v10, 4, v1         ; l*16
    v_and_b32 v11, 3, v1
    v_bfe_u32 v12, v1, 2, 1
    v_lshl_add_u32 v11, v12, 3, v11
    v_bfe_u32 v12, v1, 3, 1
    v_lshl_add_u32 v11, v12, 2, v11  ; swap23(n%16)
    v_lshlrev_b32 v11, 4, v11
    v_and_b32 v13, 48, v1
    v_lshl_add_u32 v13, v13, 4, v11
    v_lshl_add_u32 v11, v15, 8, v11
    v_bfe_u32 v12, v1, 4, 1
    v_lshl_add_u32 v11, v12, 17, v11
    s_waitcnt lgkmcnt(3)
    v_add_f32 v64, v64, v66
    v_add_f32 v65, v65, v67
    v_add_f32 v68, v68, v70
    v_add_f32 v69, v69, v71
    v_add_f32 v64, v64, v68
    v_add_f32 v65, v65, v69
    v_mul_f32 v84, {f2h(-1.0/512)}, v64      ; -mean
    v_mul_f32 v65, {f2h(1.0/512)}, v65
    v_fma_f32 v65, -v84, v84, v65
    v_max_f32 v65, 0, v65
    v_add_f32 v65, {f2h(1e-5)}, v65
    v_rsq_f32 v86, v65
    ds_write_b32 v8, v84 offset:128
    s_waitcnt lgkmcnt(1)
    v_add_f32 v72, v72, v73
    v_add_f32 v74, v74, v75
    v_add_f32 v76, v76, v77
    v_add_f32 v78, v78, v79
    ds_write_b32 v8, v86
    v_add_f32 v72, v72, v74
    v_add_f32 v76, v76, v78
    ds_write_b32 v8, v72 offset:256
    ds_write_b32 v8, v76 offset:384
    v_add_f32 v80, v80, v81
    v_add_f32 v82, v82, v83
    v_add_f32 v90, v80, v82
    v_mul_f32 v88, {f2h(0.25*1.4426950408889634)}, v86   ; q scale
    """)
    for arr, off in ((0, 256), (1, 384), (3, 128), (2, 0)):
        for q in range(4):
            p(f"ds_read_b128 v[{T+16*arr+4*q}:{T+16*arr+4*q+3}], v9 offset:{off + 32*q}", tag=("p", arr))
    O = 64
    for which, acc, arr, sc, so in ((0, ACQ, 0, 88, ("s52", "s53")), (1, ACK, 1, 86, ("s54", "s55"))):
        p.wait(lg=("p", arr))
        for r in range(0, 16, 2):
            p(f"v_pk_fma_f32 v[{acc+r}:{acc+r+1}], v[{T+16*arr+r}:{T+16*arr+r+1}], v[84:85], v[{acc+r}:{acc+r+1}] op_sel_hi:[1,0,1]")
        for r in range(0, 16, 2):
            p(f"v_pk_mul_f32 v[{acc+r}:{acc+r+1}], v[{acc+r}:{acc+r+1}], v[{sc}:{sc+1}] op_sel_hi:[1,0]")
        for pp in range(2):
            o = O + 8 * which + 4 * pp
            for j in range(4):
                p(f"v_cvt_pk_bf16_f32 v{o+j}, v{acc+8*pp+2*j}, v{acc+8*pp+2*j+1}")
            p(f"buffer_store_dwordx4 v[{o}:{o+3}], v{13 if which else 10}, s[44:47], {so[pp]} offen")
    p.wait(lg=[("p", 2), ("p", 3)])
    for r in range(0, 16, 2):
        p(f"v_pk_fma_f32 v[{ACV+r}:{ACV+r+1}], v[{T+48+r}:{T+48+r+1}], v[90:91], v[{ACV+r}:{ACV+r+1}] op_sel_hi:[1,0,1]")
    for r in range(0, 16, 2):
        p(f"v_pk_mul_f32 v[{ACV+r}:{ACV+r+1}], v[{ACV+r}:{ACV+r+1}], v[{T+32+r}:{T+32+r+1}]")
    for pp in range(2):
        o = O + 16 + 4 * pp
        for j in range(4):
            p(f"v_cvt_pk_bf16_f32 v{o+j}, v{ACV+8*pp+2*j}, v{ACV+8*pp+2*j+1}")
        p(f"buffer_store_dwordx4 v[{o}:{o+3}], v11, s[44:47], s54 offen offset:{1024 + 512*pp}")
    if prof:
        p(f"""
        s_memtime s[78:79]
        s_waitcnt vmcnt(0) lgkmcnt(0)
        s_memtime s[80:81]
        s_memrealtime s[100:101]
        s_waitcnt lgkmcnt(0)
        s_lshl_b32 s35, s42, 5
        s_add_u32 s35, s35, {PROF}
        s_sub_u32 s72, s72, s70
        s_sub_u32 s74, s74, s70
        s_sub_u32 s76, s76, s70
        s_sub_u32 s78, s78, s70
        s_sub_u32 s80, s80, s70
        v_mov_b32 v4, s72
        v_mov_b32 v5, s74
        v_mov_b32 v6, s76
        v_mov_b32 v7, s78
        v_mov_b32 v8, s80
        v_mov_b32 v9, 0
        buffer_store_dwordx4 v[4:7], v9, s[44:47], s35 offen
        buffer_store_dword v8, v9, s[44:47], s35 offen offset:16
        s_sub_u32 s100, s100, s98
        v_mov_b32 v10, s100
        v_mov_b32 v11, s98
        buffer_store_dwordx2 v[10:11], v9, s[44:47], s35 offen offset:24
        """)
    p("K1_END:\ns_endpgm")
    return p, 147456 + 5120 + 2048
```

```python
from asmlib import Prog
from layout import *

LOG2E = 1.4426950408889634
SLOT = 2304
ATT_LDS = 64 * SLOT
TB, TSTR, HL = 0, 34816, 69632

VL = 2
VC, VF0, VF1 = 9, 10, 11
VK, VV0, VV1 = 12, 15, 18
QA, QB = 24, 28
P0, P1 = 32, 36
KB = (40, 44); V0B = (48, 56); V1B = (52, 60)
SA, SB, OA, OB = 64, 80, 96, 112
TMP = 128
W2V = 144
VTW, VTR, VXO, VHO, VSO = 9, 10, 11, 13, 15
VHW = 16
XR, HR = 128, 136


def R(k, a, n=4): return f"{k}[{a}:{a+n-1}]"


def m32(d, a, b, c=None, ka="v", kb="v"):
    cc = R("v", c, 16) if c is not None else "0"
    return f"v_mfma_f32_32x32x16_bf16 {R('v', d, 16)}, {R(ka, a)}, {R(kb, b)}, {cc}"


def m16(d, a, b, c=None, ka="v", kb="v"):
    cc = R("v", c) if c is not None else "0"
    return f"v_mfma_f32_16x16x32_bf16 {R('v', d)}, {R(ka, a)}, {R(kb, b)}, {cc}"


class K2:
    def __init__(self, name, opt, prof, pidx):
        self.p = Prog(); self.name = name; self.opt = opt; self.prof = prof; self.pidx = pidx
        self.nst = 0
        self.ld = ""
        self.st = ""

    def stamp(self):
        if self.prof:
            op = "s_memrealtime" if self.opt.get("rt") else "s_memtime"
            self.p(f"{op} s[{70+2*self.nst}:{71+2*self.nst}]")
            self.nst += 1
            assert self.nst <= 13

    def base(self, sd, src, const, terms):
        p = self.p
        first = True
        for sreg, mult in terms:
            t = "s96" if first else "s97"
            if mult & (mult - 1) == 0: p(f"s_lshl_b32 {t}, {sreg}, {mult.bit_length()-1}")
            else: p(f"s_mul_i32 {t}, {sreg}, {mult}")
            if not first: p("s_add_u32 s96, s96, s97")
            first = False
        if const: p(f"s_add_u32 s96, s96, {const}")
        p(f"s_add_u32 s{sd}, s{src}, s96\ns_addc_u32 s{sd+1}, s{src+1}, 0")

    def frag(self, kind, reg, sb, q, tag, mods=""):
        return (f"global_load_dwordx4 {R(kind, reg)}, v{VL + q // 8}, s[{sb}:{sb+1}] offset:{(q % 8) * 1024 - 4096}{mods}", tag)

    def prologue(self):
        p = self.p
        p(f"""
        s_cmp_ge_u32 s2, 256
        s_cbranch_scc1 {self.name}_END
        s_load_dwordx2 s[6:7], s[0:1], 64
        s_load_dwordx2 s[4:5], s[0:1], 0
        s_load_dwordx4 s[8:11], s[0:1], 48
        """)
        if self.opt.get("cw", 1):
            p(f"""
            s_getpc_b64 s[18:19]
        {self.name}_PC:
            s_lshr_b32 s17, s2, 3
            s_lshl_b32 s17, s17, 12
            v_lshl_add_u32 v2, v0, 4, s17
            v_min_u32 v2, {self.name}_LAST-{self.name}_PC-16, v2
            global_load_dwordx4 v[140:143], v2, s[18:19]
            """, tag="cw")
        self.stamp()
        if self.prof: p("s_memrealtime s[98:99]")
        p(f"""
        v_lshrrev_b32 v2, 6, v0
        v_and_b32 v1, 63, v0
        v_readfirstlane_b32 s3, v2
        s_and_b32 s12, s2, 7
        s_lshr_b32 s13, s2, 3
        s_lshr_b32 s14, s13, 3
        s_and_b32 s15, s13, 7
        s_lshl_b32 s16, s12, 2
        s_add_u32 s16, s16, s14
        v_lshlrev_b32 v{VL}, 4, v1
        """)
        for k in range(1, 7): p(f"v_add_u32 v{VL+k}, {8192*k}, v{VL}")
        p("s_waitcnt lgkmcnt(0)")

    def finish(self):
        p = self.p
        if self.prof:
            p("s_waitcnt vmcnt(0)")
            self.stamp()
            p("s_memrealtime s[100:101]")
            p("s_waitcnt lgkmcnt(0)")
            p("s_lshl_b32 s17, s2, 2\ns_add_u32 s17, s17, s3")
            self.base(18, 6, PROF + self.pidx * 65536, [("s17", 64)])
            p("v_mov_b32 v32, 0")
            for k in range(1, self.nst):
                p(f"s_sub_u32 s17, s{70+2*k}, s70\nv_mov_b32 v33, s17\nglobal_store_dword v32, v33, s[18:19] offset:{4*(k-1)}")
            p(f"s_sub_u32 s17, s100, s98\nv_mov_b32 v33, s17\nglobal_store_dword v32, v33, s[18:19] offset:56")
            p(f"v_mov_b32 v33, s98\nglobal_store_dword v32, v33, s[18:19] offset:60")
        p(f"{self.name}_END:\ns_endpgm")

    def attn(self, extra=()):
        p = self.p; N = self.name
        self.base(20, 6, KV, [("s13", 131072)])
        p("s_lshl_b32 s17, s12, 2\ns_add_u32 s17, s17, s3")
        self.base(22, 6, QF, [("s13", 65536), ("s17", 2048)])
        p(f"""
        s_lshl_b32 s26, s3, 10
        v_add_u32 v{VF0}, s26, v{VL}
        s_lshr_b32 s24, s3, 1
        s_mul_i32 s24, s24, {SLOT}
        s_and_b32 s25, s3, 1
        s_lshl_b32 s25, s25, 10
        s_add_u32 m0, s24, s25
        v_add_u32 v{VF1}, 4096, v{VF0}
        """)
        p(f"global_load_lds_dwordx4 v{VF0}, s[20:21]", tag=("g", 0))
        p(f"global_load_dwordx4 {R('v', QA)}, v{VL}, s[22:23]", tag=("g", 0))
        p(f"global_load_dwordx4 {R('v', QB)}, v{VL}, s[22:23] offset:1024", tag=("g", 0))
        p(f"s_add_u32 m0, m0, {2*SLOT}\ns_mul_i32 s25, s3, {SLOT}\ns_lshl_b32 s26, s3, 11")
        p(f"global_load_lds_dwordx4 v{VF1}, s[20:21]", tag=("g", 2))
        p(f"v_add_u32 v{VC}, s26, v{VL+1}")
        G0 = self.opt.get("G0", 3)

        def grp(G):
            return [(f"s_add_u32 m0, s25, {G*4*SLOT}", None), (f"global_load_lds_dwordx4 v{VC}, s[20:21]", ("g", 4*G)),
                    (f"global_load_lds_dwordx4 v{VC}, s[20:21] offset:1024", ("g", 4*G)), (f"v_add_u32 v{VC}, 8192, v{VC}", None)]
        for G in range(1, G0):
            for t, tag in grp(G): p(t, tag=tag)
        p(f"""
        v_lshrrev_b32 v64, 4, v1
        s_lshl_b32 s26, s3, 4
        v_add_u32 v64, s26, v64
        v_mul_u32_u24 v64, {SLOT}, v64
        v_and_b32 v65, 15, v1
        v_lshl_add_u32 v64, v65, 4, v64
        v_and_b32 v68, {3 if self.opt.get("zr", 1) else 0}, v1
        v_cmp_eq_u32 vcc, 0, v68
        v_mov_b32 v69, 0x3f803f80
        v_cndmask_b32 v68, 0, v69, vcc
        v_mov_b32 v69, v68
        v_mov_b32 v70, v68
        v_mov_b32 v71, v68
        ds_write_b128 v64, v[68:71] offset:2048
        ds_write_b128 v64, v[68:71] offset:{2048 + 4*SLOT}
        ds_write_b128 v64, v[68:71] offset:{2048 + 8*SLOT}
        ds_write_b128 v64, v[68:71] offset:{2048 + 12*SLOT}
        v_lshrrev_b32 v66, 5, v1
        v_lshlrev_b32 v66, 8, v66
        v_lshl_add_u32 v66, v65, 4, v66
        v_add_u32 v66, 1024, v66
        v_add_u32 v67, -4, v65
        v_cmp_gt_u32 vcc, 8, v67
        v_mov_b32 v67, 2048
        v_mov_b32 v72, {2048 + 64}
        v_cndmask_b32 v67, v67, v72, vcc
        v_and_b32 v72, 11, v65
        v_cmp_eq_u32 vcc, 0, v72
        v_add_u32 v72, 16, v67
        v_cndmask_b32 v67, v72, v67, vcc
        v_and_b32 v72, 16, v1
        v_cmp_eq_u32 vcc, 0, v72
        v_add_u32 v72, 512, v66
        v_mov_b32 v{VK}, v{VL}
        v_cndmask_b32 v{VV0}, v67, v66, vcc
        v_cndmask_b32 v{VV1}, v67, v72, vcc
        """)
        for wdw in (1, 2):
            for b in (VK, VV0, VV1): p(f"v_add_u32 v{b+wdw}, {wdw*28*SLOT}, v{b}")
        self.base(22, 6, OF, [("s13", 1024), ("s17", 65536)])

        def rd(kind, t):
            wdw, off = divmod(t, 28)
            reg = {"K": KB, "V0": V0B, "V1": V1B}[kind][t % 2]
            adr = {"K": VK, "V0": VV0, "V1": VV1}[kind] + wdw
            return f"ds_read_b128 {R('v', reg)}, v{adr} offset:{off*SLOT}"
        self.stamp()
        t = p.wait_txt(vm=("g", 0))
        p(t + " lgkmcnt(0)\ns_barrier")
        self.stamp()
        p(rd("K", 0) + "\n" + rd("V0", 0) + "\n" + rd("V1", 0) + "\n" + rd("K", 1))
        p("s_waitcnt lgkmcnt(3)")
        p(m32(SA, KB[0], QA))
        p("s_waitcnt lgkmcnt(0)")
        slots = {}
        def put(t, name, items): slots.setdefault((t, name), []).extend(items)
        for G in range(G0, 16):
            g = grp(G); t0 = 2 * (G - G0)
            put(t0, "A19", [g[0]]); put(t0, "B12", [g[1]]); put(t0 + 1, "A19", [g[2], g[3]])
        bars = [2, 4, 8, 12, 24, 48, 64]
        for a, b in zip(bars[:-1], bars[1:]):
            put(a - 2, "B12", [("BAR", [("g", x) for x in range(a, b)])])
        extra = list(extra)
        free = [(t, "B12") for t in range(1, 26, 2)] + [(t, n) for t in range(26, 62) for n in ("A19", "B12")]
        free = [f for f in free if f not in slots]
        per = -(-len(extra) // len(free)) if extra else 0
        for f in free:
            for _ in range(per):
                if extra: put(f[0], f[1], [extra.pop(0)])
        assert not extra

        def slot(t, name):
            for txt, tag in slots.get((t, name), []):
                if txt == "BAR":
                    p.wait(vm=tag); p("s_barrier")
                else:
                    p(txt, tag=tag)

        X_ = self.opt.get("x", 0)
        p0 = p
        def p(txt, tag=None):
            if X_ & 1 and txt.startswith("ds_read"): return
            if X_ & 2 and txt.startswith("v_mfma") and not txt.endswith(", 0"): return
            if X_ & 4 and txt.startswith("v_mfma") and txt.endswith(", 0"): return
            if X_ & 8 and txt.startswith("v_exp"): txt = txt.replace("v_exp_f32", "v_mov_b32") + "\n" + txt.replace("v_exp_f32", "v_mov_b32")
            if X_ & 16 and txt.startswith("v_cvt"): txt = "s_nop 0"
            p0(txt, tag=tag)
        p.wait = p0.wait
        for t in range(64):
            if self.opt.get("fine") and t % 8 == 0 and t: self.stamp()
            for X in "AB":
                S, O = (SA, OA) if X == "A" else (SB, OB)
                Sp, Op = (SB, OB) if X == "A" else (SA, OA)
                tp = t if X == "B" else t - 1
                first = (t == 0 and X == "A"); last = (t == 63 and X == "B")
                e = lambda i: p(f"v_exp_f32 v{S+i}, v{S+i}")
                c = lambda j: p(f"v_cvt_pk_bf16_f32 v{(P0 if j < 4 else P1) + j % 4}, v{S+2*j}, v{S+2*j+1}")
                e(0)
                if not first: p(f"v_cvt_pk_bf16_f32 v{P1+3}, v{Sp+14}, v{Sp+15}")
                e(1); e(2)
                if not first: p(m32(Op, V1B[tp % 2], P1, Op))
                if X == "A":
                    if t < 63: p(rd("V0", t + 1))
                else:
                    p("s_waitcnt lgkmcnt(0)")
                c(0); e(3); e(4); c(1); e(5); e(6)
                if X == "A":
                    p(m32(SB, KB[t % 2], QB))
                    if t < 63: p(rd("V1", t + 1))
                elif not last:
                    p(m32(SA, KB[(t + 1) % 2], QA))
                    slot(t, "B12")
                c(2); e(7); e(8); c(3); e(9); e(10)
                p(m32(O, V0B[t % 2], P0, None if t == 0 else O))
                if X == "A": slot(t, "A19")
                elif t < 62: p(rd("K", t + 2))
                c(4); e(11); e(12); c(5); e(13); e(14); c(6); e(15)
        p = p0
        p(f"v_cvt_pk_bf16_f32 v{P1+3}, v{SB+14}, v{SB+15}")
        p(m32(OB, V1B[1], P1, OB))
        self.stamp()
        T = TMP
        p(f"v_pk_mul_f32 v[{T}:{T+1}], v[{OA}:{OA+1}], 0 op_sel_hi:[1,0]")
        for r in (2, 4, 6): p(f"v_pk_fma_f32 v[{T}:{T+1}], v[{OA+r}:{OA+r+1}], 0, v[{T}:{T+1}] op_sel_hi:[1,0,1]")
        p(f"v_rcp_f32 v{T+4}, v{OA+8}")
        for r in (0, 2, 4, 6): p(f"v_pk_fma_f32 v[{T}:{T+1}], v[{OB+r}:{OB+r+1}], 0, v[{T}:{T+1}] op_sel_hi:[1,0,1]")
        p(f"""
        v_min_f32 v{T+2}, v{OA+8}, v{OB+8}
        v_max_f32 v{T+3}, v{OA+8}, v{OB+8}
        v_cmp_u_f32 s[26:27], v{T}, v{T+1}
        v_cmp_gt_f32 vcc, {f2h(2.0**-30)}, v{T+2}
        s_or_b64 s[26:27], s[26:27], vcc
        v_cmp_lt_f32 vcc, {f2h(2.0**60)}, v{T+3}
        s_or_b64 s[26:27], s[26:27], vcc
        {"s_nop 0" if X_ else f"s_cbranch_scc1 {N}_FB"}
    {N}_PUB:
        v_rcp_f32 v{T+6}, v{OB+8}
        """)
        for O, rr, vo in ((OA, T + 4, VL), (OB, T + 6, VL + 4)):
            for r in (0, 2, 4, 6): p(f"v_pk_mul_f32 v[{O+r}:{O+r+1}], v[{O+r}:{O+r+1}], v[{rr}:{rr+1}] op_sel_hi:[1,0]")
            for j in range(4): p(f"v_cvt_pk_bf16_f32 v{O+12+j}, v{O+2*j}, v{O+2*j+1}")
            p(f"global_store_dwordx4 v{vo}, {R('v', O+12)}, s[22:23]{self.st}", tag="opub")

    def attn_fallback(self):
        p = self.p; N = self.name; T = TMP
        p(f"{N}_FB:")
        for X, Q, O in (("A", QA, OA), ("B", QB, OB)):
            p(f"""
            v_mov_b32 v{P0}, 0xff800000
            v_mov_b32 v{SB}, v{VK}
            s_mov_b32 s26, 64
        {N}_FB1{X}:
            ds_read_b128 {R('v', KB[0])}, v{SB}
            v_add_u32 v{SB}, {SLOT}, v{SB}
            s_waitcnt lgkmcnt(0)
            """)
            p(m32(SA, KB[0], Q))
            for i in range(8): p(f"v_max3_f32 v{P0}, v{SA+2*i}, v{SA+2*i+1}, v{P0}")
            p(f"""
            s_sub_u32 s26, s26, 1
            s_cmp_lg_u32 s26, 0
            s_cbranch_scc1 {N}_FB1{X}
            v_mov_b32 v{P0+1}, v{P0}
            v_permlane32_swap_b32 v{P0}, v{P0+1}
            v_max_f32 v{P0}, v{P0}, v{P0+1}
            """)
            for i in range(16): p(f"v_sub_f32 v{T+i}, 0, v{P0}\nv_mov_b32 v{O+i}, 0")
            p(f"""
            v_mov_b32 v{SB}, v{VK}
            v_mov_b32 v{SB+1}, v{VV0}
            v_mov_b32 v{SB+2}, v{VV1}
            s_mov_b32 s26, 64
        {N}_FB2{X}:
            ds_read_b128 {R('v', KB[0])}, v{SB}
            ds_read_b128 {R('v', V0B[0])}, v{SB+1}
            ds_read_b128 {R('v', V1B[0])}, v{SB+2}
            v_add_u32 v{SB}, {SLOT}, v{SB}
            v_add_u32 v{SB+1}, {SLOT}, v{SB+1}
            v_add_u32 v{SB+2}, {SLOT}, v{SB+2}
            s_waitcnt lgkmcnt(0)
            """)
            p(m32(SA, KB[0], Q, T))
            for i in range(16): p(f"v_exp_f32 v{SA+i}, v{SA+i}")
            for j in range(8): p(f"v_cvt_pk_bf16_f32 v{P0+j}, v{SA+2*j}, v{SA+2*j+1}")
            p(m32(O, V0B[0], P0, O)); p(m32(O, V1B[0], P1, O))
            p(f"s_sub_u32 s26, s26, 1\ns_cmp_lg_u32 s26, 0\ns_cbranch_scc1 {N}_FB2{X}")
        p(f"v_rcp_f32 v{T+4}, v{OA+8}\ns_nop 7\ns_branch {N}_PUB")

    def post_setup(self):
        p = self.p
        p(f"""
        v_and_b32 v20, 31, v1
        v_lshrrev_b32 v21, 5, v1
        v_mul_u32_u24 v20, 272, v20
        v_lshl_add_u32 v20, v21, 4, v20
        s_mul_i32 s17, s3, 8704
        v_add_u32 v{VTW}, s17, v20
        v_lshrrev_b32 v20, 3, v1             ; tt
        v_and_b32 v21, 7, v1                 ; fc
        v_mul_u32_u24 v22, 272, v20
        v_lshl_add_u32 v22, v21, 5, v22
        s_mul_i32 s17, s3, {8*272}
        v_add_u32 v{VTR}, s17, v22
        v_lshlrev_b32 v{VSO}, 4, v20
        v_lshl_add_u32 v{VHO}, v21, 8, v{VSO}
        v_add_u32 v{VHO+1}, 32768, v{VHO}
        v_lshlrev_b32 v22, 10, v20
        v_lshl_add_u32 v{VXO}, v21, 4, v22
        v_add_u32 v{VXO+1}, 32768, v{VXO}
        s_lshl_b32 s17, s3, 12
        s_add_u32 s17, s17, {HL}
        v_add_u32 v{VHW}, s17, v{VL}
        v_add_u32 v{VHW+1}, {HL}, v{VL}
        s_lshr_b32 s28, s3, 1
        s_and_b32 s29, s3, 1
        s_lshr_b32 s30, s15, 1
        s_and_b32 s31, s15, 1
        s_mov_b32 s33, 0x3f803f80
        """)
        self.base(34, 6, OF + 4096, [("s16", 65536), ("s3", 8192)])
        self.base(36, 4, 0, [("s16", 65536), ("s3", 8192), ("s15", 128)])
        self.base(38, 8, 0, [("s16", 65536), ("s3", 8192), ("s15", 128)])
        self.base(40, 6, HF, [("s16", 65536), ("s28", 16384), ("s29", 128), ("s15", 2048)])
        self.base(42, 6, ST, [("s16", 4096), ("s30", 1024), ("s31", 8), ("s3", 128)])
        self.base(44, 6, HF, [("s16", 65536), ("s3", 4096)])
        self.base(46, 6, ST, [("s16", 4096)])
        self.base(48, 6, GF, [("s16", 2 * 90112), ("s3", 22528), ("s15", 1024)])
        p("s_add_u32 s50, s48, 90112\ns_addc_u32 s51, s49, 0")
        self.base(52, 6, GF + 4096, [("s16", 2 * 90112), ("s3", 22528)])
        p("s_add_u32 s54, s52, 90112\ns_addc_u32 s55, s53, 0")

    def wbases(self):
        p = self.p
        self.base(56, 6, WOF + 4096, [("s15", 65536), ("s3", 16384)])
        self.base(58, 6, W1F + 4096, [("s15", 65536), ("s3", 16384)])
        p(f"s_add_u32 s60, s58, {32*16384}\ns_addc_u32 s61, s59, 0\ns_add_u32 s62, s58, {64*16384}\ns_addc_u32 s63, s59, 0")
        self.base(64, 6, W2F + 4096, [("s15", 4 * 45056), ("s3", 45056)])

    def wo_loads(self): return [self.frag("a", 4 * q, 56, q, ("wo", q // 2)) for q in range(16)]
    def w1_loads(self): return [self.frag("a", 64 + 64 * k + 4 * q, 58 + 2 * k, q, ("w1", k)) for k in range(3) for q in range(16)]

    @staticmethod
    def w2reg(q): return ("v", W2V + 4 * q) if q < 28 else ("a", 4 * (q - 28))
    def w2_loads(self, lo, hi): return [self.frag(*self.w2reg(q), 64, q, ("w2", q // 2)) for q in range(lo, hi)]

    def twrites(self, rt, acc):
        return [f"ds_write_b128 v{VTW}, {R('v', acc + 16*ct + 4*q)} offset:{TB + rt*TSTR + ct*128 + q*32}" for ct in range(2) for q in range(4)]

    def treads(self, rt, dst):
        for w in range(4):
            for i in range(2):
                self.p(f"ds_read_b128 {R('v', dst + 8*w + 4*i)}, v{VTR} offset:{TB + rt*TSTR + w*8704 + 16*i}", tag=("tr", rt, w))

    def tsum(self, rt, P, res, dst):
        p = self.p; U = 24
        for j in range(4):
            p(f"v_lshlrev_b32 v{U+2*j}, 16, v{res+j}\nv_and_b32 v{U+2*j+1}, 0xffff0000, v{res+j}")
        p.wait(lg=("tr", rt, 1))
        for r in range(0, 8, 2): p(f"v_pk_add_f32 v[{P+r}:{P+r+1}], v[{P+r}:{P+r+1}], v[{P+8+r}:{P+9+r}]")
        p.wait(lg=("tr", rt, 2))
        for r in range(0, 8, 2): p(f"v_pk_add_f32 v[{U+r}:{U+r+1}], v[{U+r}:{U+r+1}], v[{P+16+r}:{P+17+r}]")
        p.wait(lg=("tr", rt, 3))
        for r in range(0, 8, 2): p(f"v_pk_add_f32 v[{P+r}:{P+r+1}], v[{P+r}:{P+r+1}], v[{P+24+r}:{P+25+r}]")
        for r in range(0, 8, 2): p(f"v_pk_add_f32 v[{P+r}:{P+r+1}], v[{P+r}:{P+r+1}], v[{U+r}:{U+r+1}]")
        for j in range(4): p(f"v_cvt_pk_bf16_f32 v{dst+j}, v{P+2*j}, v{P+2*j+1}")

    def splitk(self, nk, areg, atag, breg, btag, epi, skip_last=False, mid=()):
        p = self.p
        ACC = (32, 64)
        mid = list(mid)
        for rt in range(2):
            wr = self.twrites(0, ACC[0]) if rt else []
            for k in range(nk):
                lab = None
                if skip_last and k == nk - 1:
                    lab = p.label(f"{self.name}_SK{rt}")
                    p(f"s_cmp_ge_u32 s3, 2\ns_cbranch_scc1 {lab}")
                p.wait(vm=[atag(k), btag(rt, k)])
                for ct in range(2):
                    ka, ra = areg(k, ct); kb, rb = breg(rt, k)
                    d = ACC[rt] + 16 * ct
                    p(m32(d, ra, rb, None if k == 0 else d, ka, kb))
                    if wr and k >= 3 and not lab: p(wr.pop(0), tag="tw0")
                    elif mid and rt == 1 and not lab and k >= 1:
                        t, tag = mid.pop(0); p(t, tag=tag)
                if lab: p(f"{lab}:")
            assert not wr
        for t, tag in mid: p(t, tag=tag)
        self.stamp()
        p("s_waitcnt lgkmcnt(0)\ns_barrier")
        self.treads(0, ACC[0])
        for t in self.twrites(1, ACC[1]): p(t, tag="tw1")
        epi(0, ACC[0])
        p("s_waitcnt lgkmcnt(0)\ns_barrier")
        self.treads(1, ACC[1])
        epi(1, ACC[1])

    def wo(self, mid=()):
        p = self.p
        B = (64, 96)
        for rt in range(2):
            for k in range(8):
                p(f"global_load_dwordx4 {R('v', B[rt]+4*k)}, v{VL+4*rt}, s[34:35] offset:{k*1024-4096}{self.ld}", tag=("o", rt, k))
        for rt in range(2):
            p(f"global_load_dwordx4 {R('v', XR+4*rt)}, v{VXO+rt}, s[36:37]", tag=("x", rt))

        def epi(rt, P):
            p.wait(vm=("x", rt))
            h = HR + 4 * rt
            self.tsum(rt, P, XR + 4 * rt, h)
            p(f"global_store_dwordx4 v{VHO+rt}, {R('v', h)}, s[40:41]{self.st}", tag="hpub")
            p("v_mov_b32 v20, 0\nv_mov_b32 v21, 0")
            for j in range(4): p(f"v_dot2c_f32_bf16 v20, s33, v{h+j}\nv_dot2c_f32_bf16 v21, v{h+j}, v{h+j}")
            for d in ("quad_perm:[1,0,3,2]", "quad_perm:[2,3,0,1]", "row_half_mirror"):
                p(f"v_add_f32_dpp v20, v20, v20 {d} row_mask:0xf bank_mask:0xf\nv_add_f32_dpp v21, v21, v21 {d} row_mask:0xf bank_mask:0xf")
            p(f"""
            s_mov_b32 exec_lo, 0x01010101
            s_mov_b32 exec_hi, 0x01010101
            global_store_dwordx2 v{VSO}, v[20:21], s[42:43] offset:{512*rt}{self.st}
            s_mov_b64 exec, -1
            """, tag="hpub")
        self.splitk(8, lambda k, ct: ("a", 8 * k + 4 * ct), lambda k: ("wo", k),
                    lambda rt, k: ("v", B[rt] + 4 * k), lambda rt, k: ("o", rt, k), epi, mid=mid)

    def w1(self):
        p = self.p; N = self.name
        HS = 32
        SS = 96
        CS = 112
        RS, NM = 20, 24
        BR = 124
        ring = (124, 128, 132, 28)
        for a in range(4):
            for i in range(4):
                p(f"global_load_dwordx4 {R('v', HS+16*a+4*i)}, v{VL+2*a}, s[44:45] offset:{i*1024}{self.ld}", tag=("h", a))
            if a == 0:
                for jp in range(4):
                    p(f"global_load_dwordx4 {R('v', SS+4*jp)}, v{VL}, s[46:47] offset:{jp*1024}{self.ld}", tag="st")
        for j in range(4): p(f"v_mov_b32 v{28+j}, s33")
        p.wait(vm=[("w1", k) for k in range(3)])
        for ks in range(16):
            for k in range(3):
                p(m16(CS + 4 * k, 64 + 64 * k + 4 * ks, 28, None if ks == 0 else CS + 4 * k, "a"))
        self.stamp()

        def hwrite(a):
            p.wait(vm=("h", a))
            for i in range(4):
                p(f"ds_write_b128 v{VHW}, {R('v', HS+16*a+4*i)} offset:{a*16384 + i*1024}", tag=("hw", a))
        hwrite(0)
        p("s_waitcnt lgkmcnt(0)\ns_barrier")
        self.stamp()

        def brd(s):
            return f"ds_read_b128 {R('v', ring[s % 4])}, v{VHW+1} offset:{s*1024}"
        for s in range(3): p(brd(s), tag=("b", s))
        p.wait(vm="st")
        for jp in range(4): p(f"v_pk_add_f32 v[{SS+4*jp}:{SS+4*jp+1}], v[{SS+4*jp}:{SS+4*jp+1}], v[{SS+4*jp+2}:{SS+4*jp+3}]")
        p(f"""
        v_pk_add_f32 v[{SS}:{SS+1}], v[{SS}:{SS+1}], v[{SS+4}:{SS+5}]
        v_pk_add_f32 v[{SS+8}:{SS+9}], v[{SS+8}:{SS+9}], v[{SS+12}:{SS+13}]
        v_pk_add_f32 v[{SS}:{SS+1}], v[{SS}:{SS+1}], v[{SS+8}:{SS+9}]
        v_mul_f32 v{SS}, {f2h(-1.0/512)}, v{SS}
        v_mul_f32 v{SS+1}, {f2h(1.0/512)}, v{SS+1}
        v_fma_f32 v{SS+1}, -v{SS}, v{SS}, v{SS+1}
        v_max_f32 v{SS+1}, 0, v{SS+1}
        v_add_f32 v{SS+1}, {f2h(1e-5)}, v{SS+1}
        v_rsq_f32 v{SS+1}, v{SS+1}
        s_mov_b32 s32, {f2h(-LOG2E)}
        v_mul_f32 v{RS}, s32, v{SS+1}
        v_mul_f32 v{NM}, v{SS}, v{RS}
        v_mov_b32 v{RS+2}, v{RS}
        v_mov_b32 v{NM+2}, v{NM}
        v_permlane32_swap_b32 v{RS}, v{RS+2}
        v_permlane32_swap_b32 v{NM}, v{NM+2}
        v_mov_b32 v{RS+1}, v{RS}
        v_mov_b32 v{RS+3}, v{RS+2}
        v_mov_b32 v{NM+1}, v{NM}
        v_mov_b32 v{NM+3}, v{NM+2}
        v_permlane16_swap_b32 v{RS}, v{RS+1}
        v_permlane16_swap_b32 v{RS+2}, v{RS+3}
        v_permlane16_swap_b32 v{NM}, v{NM+1}
        v_permlane16_swap_b32 v{NM+2}, v{NM+3}
        """)
        ACC = (96, 32)
        GP = 48
        TT = 108

        def sel(base, a):
            lo = base + (a & ~1)
            return f"v[{lo}:{lo+1}]", a & 1

        def epi(a):
            out = []
            rs, b = sel(RS, a); nm, _ = sel(NM, a)
            for k in range(3):
                acc = ACC[a % 2] + 4 * k
                for h in range(2):
                    z = acc + 2 * h; t = TT + 2 * h
                    out.append(f"v_pk_mul_f32 v[{t}:{t+1}], v[{CS+4*k+2*h}:{CS+4*k+2*h+1}], {nm} op_sel:[0,{b}] op_sel_hi:[1,{b}]")
                    out.append(f"v_pk_fma_f32 v[{z}:{z+1}], v[{z}:{z+1}], {rs}, v[{t}:{t+1}] op_sel:[0,{b},0] op_sel_hi:[1,{b},1]")
                for h in range(2):
                    z = acc + 2 * h; t = TT + 2 * h
                    out += [f"v_exp_f32 v{t}, v{z}", f"v_exp_f32 v{t+1}, v{z+1}"]
                for h in range(2):
                    t = TT + 2 * h
                    out.append(f"v_pk_fma_f32 v[{t}:{t+1}], v[{t}:{t+1}], s[32:33], s[32:33] op_sel_hi:[1,0,0]")
                for i in range(4): out.append(f"v_rcp_f32 v{TT+i}, v{TT+i}")
                for h in range(2):
                    z = acc + 2 * h; t = TT + 2 * h
                    out.append(f"v_pk_mul_f32 v[{z}:{z+1}], v[{z}:{z+1}], v[{t}:{t+1}]")
                for h in range(2):
                    out.append(f"v_cvt_pk_bf16_f32 v{GP+4*k+2*(a%2)+h}, v{acc+2*h}, v{acc+2*h+1}")
            if a % 2:
                for k in range(3):
                    g = GP + 4 * k
                    out += [f"v_permlane16_swap_b32 v{g}, v{g+2}", f"v_permlane16_swap_b32 v{g+1}, v{g+3}"]
                sb = 48 + 2 * (a // 2)
                for k in range(2):
                    out.append(f"global_store_dwordx4 v{VL+k}, {R('v', GP+4*k)}, s[{sb}:{sb+1}]{self.st}")
                lab = f"{N}_G{a}"
                out.append(f"s_cmp_lt_u32 s17, 22\ns_cbranch_scc0 {lab}\nglobal_store_dwordx4 v{VL+2}, {R('v', GP+8)}, s[{sb}:{sb+1}]{self.st}\n{lab}:")
            return out
        p("s_lshl_b32 s17, s15, 2\ns_add_u32 s17, s17, s3")
        pend = []
        for a in range(4):
            for ks in range(16):
                s = 16 * a + ks
                if a < 3 and ks == 6: hwrite(a + 1)
                if a < 3 and ks == 12:
                    p.wait(lg=("hw", a + 1)); p("s_barrier")
                p.wait(lg=("b", s))
                for k in range(3):
                    d = ACC[a % 2] + 4 * k
                    p(m16(d, 64 + 64 * k + 4 * ks, ring[s % 4], None if ks == 0 else d, "a"))
                    if k == 0 and s + 3 < 64: p(brd(s + 3), tag=("b", s + 3))
                    elif pend and ks >= 2:
                        n = 2
                        while pend and n > 0:
                            t = pend.pop(0); p(t, tag="gpub")
                            n -= 2 if t.startswith(("v_exp", "v_rcp")) else 1
            for t in pend: p(t, tag="gpub")
            pend = epi(a)
        self.stamp()
        for t in pend: p(t, tag="gpub")

    def w2(self, wl=()):
        p = self.p
        wl = list(wl)
        loads = []
        for rt in range(2):
            for n in range(22):
                loads.append(self.frag("a", 64 + 4 * (22 * rt + n), 52 + 2 * rt, n, ("gf", rt, n), self.ld))
        if wl:
            for n in range(22):
                for t, tag in (wl[2 * n], wl[2 * n + 1], loads[n]): p(t, tag=tag)
                if n == 18: p.wait(vm=("gf", 0, 4))
            p.wait(vm=("gf", 0, 16))
            for t, tag in loads[22:]: p(t, tag=tag)
        else:
            for t, tag in loads: p(t, tag=tag)

        def epi(rt, P):
            self.tsum(rt, P, HR + 4 * rt, XR + 4 * rt)
            p(f"global_store_dwordx4 v{VXO+rt}, {R('v', XR+4*rt)}, s[38:39]")
        self.splitk(22, lambda k, ct: self.w2reg(2 * k + ct), lambda k: ("w2", k),
                    lambda rt, k: ("a", 64 + 4 * (22 * rt + k)), lambda rt, k: ("gf", rt, k), epi, skip_last=True)


def gen(opt, prof, upto):
    out = []
    k = K2("att", opt, prof, 1); k.prologue(); k.attn(); k.finish(); k.attn_fallback()
    k.p("att_LAST:")
    out.append(("att_kernel", k.p, ATT_LDS, 256))
    if upto >= 3:
        k = K2("wo", opt, prof, 2); k.prologue(); k.wbases()
        for t, tag in k.wo_loads(): k.p(t, tag=tag)
        k.post_setup(); k.stamp(); k.wo(); k.finish()
        k.p("wo_LAST:")
        out.append(("wo_kernel", k.p, 2 * TSTR, 256))
    if upto >= 4:
        k = K2("w1", opt, prof, 3); k.prologue(); k.wbases()
        l = k.w1_loads()
        for t, tag in l[:40]: k.p(t, tag=tag)
        k.post_setup()
        k.p("s_waitcnt vmcnt(30)")
        for t, tag in l[40:]: k.p(t, tag=tag)
        k.stamp(); k.w1(); k.finish()
        k.p("w1_LAST:")
        out.append(("w1_kernel", k.p, HL + 65536, 256))
    if upto >= 5:
        k = K2("w2", opt, prof, 4); k.prologue(); k.wbases(); k.post_setup()
        for rt in range(2):
            k.p(f"global_load_dwordx4 {R('v', HR+4*rt)}, v{VHO+rt}, s[40:41]", tag=("w2", 0))
        k.stamp(); k.w2(k.w2_loads(0, 44)); k.finish()
        k.p("w2_LAST:")
        out.append(("w2_kernel", k.p, 2 * TSTR, 256))
    return out
```

```python
from asmlib import Prog
from layout import *

LOG2E = 1.4426950408889634
SLOT = 2304
ATT_LDS = 64 * SLOT
TB, TSTR, HL = 0, 34816, 69632

VL = 2
VC, VF0, VF1 = 9, 10, 11
VK, VV0, VV1 = 12, 15, 18
VPO = 21
VCN = 22
QA, QB = 24, 28
P0, P1 = 32, 36
KB = (40, 44); V0B = (48, 56); V1B = (52, 60)
SA, SB, OA, OB = 64, 80, 96, 112
TMP = 40
W2V = 144
CS = 244
VTW, VTR, VXO, VHO, VSO, VHW, VPS, VPG = 9, 10, 11, 13, 15, 16, 18, 19
XR, HR = 128, 136


def R(k, a, n=4): return f"{k}[{a}:{a+n-1}]"


def m32(d, a, b, c=None, ka="v", kb="v"):
    cc = R("v", c, 16) if c is not None else "0"
    return f"v_mfma_f32_32x32x16_bf16 {R('v', d, 16)}, {R(ka, a)}, {R(kb, b)}, {cc}"


def m16(d, a, b, c=None, ka="v", kb="v"):
    cc = R("v", c) if c is not None else "0"
    return f"v_mfma_f32_16x16x32_bf16 {R('v', d)}, {R(ka, a)}, {R(kb, b)}, {cc}"


def w2reg(q):
    if q < 25: return ("v", W2V + 4 * q)
    if q < 28: return ("v", 112 + 4 * (q - 25))
    return ("a", 4 * (q - 28))


def greg(rt, n):
    m = 22 * rt + n
    return 64 + 64 * (m % 3) + 4 * (m // 3)


class K2:
    def __init__(self, name, opt, prof, pidx):
        self.p = Prog(); self.name = name; self.opt = opt; self.prof = prof; self.pidx = pidx
        self.nst = 0
        self.ool = []

    def stamp(self):
        if self.prof:
            op = "s_memrealtime" if self.opt.get("rt") else "s_memtime"
            self.p(f"{op} s[{70+2*self.nst}:{71+2*self.nst}]")
            self.nst += 1
            assert self.nst <= 10

    def lab(self): return f"{self.name}_{self.p.label()}"

    def base(self, sd, src, const, terms):
        p = self.p
        first = True
        for sreg, mult in terms:
            t = "s96" if first else "s97"
            if mult & (mult - 1) == 0: p(f"s_lshl_b32 {t}, {sreg}, {mult.bit_length()-1}")
            else: p(f"s_mul_i32 {t}, {sreg}, {mult}")
            if not first: p("s_add_u32 s96, s96, s97")
            first = False
        if const: p(f"s_add_u32 s96, s96, {const}")
        p(f"s_add_u32 s{sd}, s{src}, s96\ns_addc_u32 s{sd+1}, s{src+1}, 0")

    def frag(self, kind, reg, sb, q, tag, mods=""):
        return (f"global_load_dwordx4 {R(kind, reg)}, v{VL + q // 8}, s[{sb}:{sb+1}] offset:{(q % 8) * 1024 - 4096}{mods}", tag)

    def pub_txt(self, stores):
        lab = self.lab()
        self.ool.append(f"{lab}S:\n" + "\n".join(t + " sc0 sc1" for t in stores) + f"\ns_branch {lab}B")
        return f"s_cmp_eq_u32 s66, 0\ns_cbranch_scc1 {lab}S\n" + "\n".join(stores) + f"\n{lab}B:"

    def retry(self, loads, check):
        lab = self.lab()
        self.ool.append(f"{lab}S:\n" + "\n".join(loads) + f"""
        s_sub_u32 s67, s67, 1
        s_cbranch_scc1 {lab}X
        s_waitcnt vmcnt(0)
        {check}
        s_cbranch_vccnz {lab}S
        s_branch {lab}B
        {lab}X:
        s_mov_b32 s67, 0
        s_waitcnt vmcnt(0)
        s_branch {lab}B""")
        return f"{check}\ns_cbranch_vccnz {lab}S\n{lab}B:"

    def poll_ld(self, va, sb, off): return f"global_load_dword v0, v{va}, s[{sb}:{sb+1}] offset:{off} sc1"

    def poll_wait(self, ld):
        self.p.wait(vm="poll")
        self.p(self.retry([ld], "v_cmp_eq_u32 vcc, -1, v0"))

    def verify_txt(self, vstart, sb, n):
        lab = self.lab()
        return f"""
        v_mov_b32 v20, v{vstart}
        s_mov_b32 s17, {n}
        {lab}L:
        global_load_dword v0, v20, s[{sb}:{sb+1}] offset:-4096 sc1
        s_waitcnt vmcnt(0)
        v_cmp_eq_u32 vcc, -1, v0
        s_cbranch_vccz {lab}N
        s_sub_u32 s67, s67, 1
        s_cbranch_scc0 {lab}L
        s_mov_b32 s67, 0
        {lab}N:
        v_add_u32 v20, 1024, v20
        s_sub_u32 s17, s17, 1
        s_cmp_lg_u32 s17, 0
        s_cbranch_scc1 {lab}L
        """

    def prologue(self):
        p = self.p
        p(f"""
        s_cmp_ge_u32 s2, 256
        s_cbranch_scc1 {self.name}_END
        s_load_dwordx2 s[6:7], s[0:1], 64
        s_load_dwordx2 s[4:5], s[0:1], 0
        s_load_dwordx4 s[8:11], s[0:1], 48
        """)
        self.stamp()
        if self.prof: p("s_memrealtime s[98:99]")
        if self.opt.get("cw", 1):
            p(f"""
            s_getpc_b64 s[18:19]
        {self.name}_PC:
            s_lshr_b32 s17, s2, 3
            s_lshl_b32 s17, s17, 12
            v_lshl_add_u32 v2, v0, 4, s17
            v_min_u32 v2, {self.name}_LAST-{self.name}_PC-16, v2
            global_load_dwordx4 v[140:143], v2, s[18:19]
            """, tag="cw")
        p(f"""
        v_lshrrev_b32 v3, 6, v0
        v_and_b32 v1, 63, v0
        v_readfirstlane_b32 s3, v3
        s_and_b32 s12, s2, 7
        s_lshr_b32 s13, s2, 3
        s_lshr_b32 s14, s13, 3
        s_and_b32 s15, s13, 7
        s_lshl_b32 s16, s12, 2
        s_add_u32 s16, s16, s14
        v_lshlrev_b32 v{VL}, 4, v1
        """)
        for k in range(1, 7): p(f"v_add_u32 v{VL+k}, {8192*k}, v{VL}")
        p("s_waitcnt lgkmcnt(0)")

    def finish(self):
        p = self.p
        if self.prof:
            p("s_waitcnt vmcnt(0)")
            self.stamp()
            p("s_memrealtime s[100:101]")
            p("s_waitcnt lgkmcnt(0)")
            p("s_lshl_b32 s17, s2, 2\ns_add_u32 s17, s17, s3")
            self.base(18, 6, PROF + self.pidx * 65536, [("s17", 64)])
            p("v_mov_b32 v32, 0")
            for k in range(1, self.nst):
                p(f"s_sub_u32 s17, s{70+2*k}, s70\nv_mov_b32 v33, s17\nglobal_store_dword v32, v33, s[18:19] offset:{4*(k-1)}")
            p(f"s_sub_u32 s17, 0x100000, s67\nv_mov_b32 v33, s17\nglobal_store_dword v32, v33, s[18:19] offset:{4*(self.nst-1)}")
            p(f"s_sub_u32 s17, s100, s98\nv_mov_b32 v33, s17\nglobal_store_dword v32, v33, s[18:19] offset:56")
            p(f"v_mov_b32 v33, s98\nglobal_store_dword v32, v33, s[18:19] offset:60")
        p(f"{self.name}_END:\ns_endpgm")

    def bases(self):
        p = self.p
        p(f"""
        s_lshr_b32 s28, s3, 1
        s_and_b32 s29, s3, 1
        s_lshr_b32 s30, s15, 1
        s_and_b32 s31, s15, 1
        s_mov_b32 s32, {f2h(-LOG2E)}
        s_mov_b32 s33, 0x3f803f80
        s_lshl_b32 s69, s15, 2
        s_add_u32 s69, s69, s3               ; u = 4j + w
        s_mov_b32 s67, 0x100000
        s_getreg_b32 s68, hwreg(HW_REG_XCC_ID, 0, 3)
        s_lshl_b32 s68, s68, 3
        """)
        self.base(36, 4, 0, [("s16", 65536), ("s3", 8192), ("s15", 128)])
        p(f"""
        v_lshrrev_b32 v72, 3, v1
        v_and_b32 v73, 7, v1
        v_lshlrev_b32 v72, 10, v72
        v_lshl_add_u32 v72, v73, 4, v72
        v_add_u32 v73, 32768, v72
        """)
        for rt in range(2): p(f"global_load_dwordx4 {R('v', XR+4*rt)}, v{72+rt}, s[36:37]", tag="x")
        self.base(56, 6, WOF + 4096, [("s69", 16384)])
        self.base(58, 6, W1F + 4096, [("s69", 16384)])
        p(f"s_add_u32 s60, s58, {32*16384}\ns_addc_u32 s61, s59, 0\ns_add_u32 s62, s58, {64*16384}\ns_addc_u32 s63, s59, 0")
        self.base(64, 6, W2F + 4096, [("s69", 45056)])
        self.base(34, 6, OF + 4096, [("s16", 65536), ("s3", 8192)])
        self.base(38, 8, 0, [("s16", 65536), ("s3", 8192), ("s15", 128)])
        self.base(40, 6, HF, [("s16", 65536), ("s28", 16384), ("s29", 128), ("s15", 2048)])
        self.base(42, 6, ST, [("s16", 4096), ("s30", 1024), ("s31", 8), ("s3", 128)])
        self.base(44, 6, HF, [("s16", 65536), ("s3", 4096)])
        self.base(46, 6, ST, [("s16", 4096)])
        self.base(48, 6, GF, [("s16", 2 * 90112), ("s3", 22528), ("s15", 1024)])
        p("s_add_u32 s50, s48, 90112\ns_addc_u32 s51, s49, 0")
        self.base(52, 6, GF + 4096, [("s16", 2 * 90112), ("s3", 22528)])
        p("s_add_u32 s54, s52, 90112\ns_addc_u32 s55, s53, 0")
        self.base(90, 6, OF, [("s16", 65536), ("s69", 2048)])
        p(f"s_add_u32 s92, s90, {HF - OF}\ns_addc_u32 s93, s91, 0")
        p("s_mul_i32 s26, s69, 11\ns_lshr_b32 s26, s26, 1")
        self.base(94, 6, GF + 2048, [("s16", 2 * 90112), ("s26", 1024)])
        p(f"""
        v_and_b32 v72, 7, v1
        v_lshlrev_b32 v72, 10, v72
        v_bfe_u32 v73, v1, 3, 1
        v_lshl_add_u32 v72, v73, 15, v72
        v_lshrrev_b32 v73, 4, v1
        v_lshl_add_u32 v{VPO}, v73, 8, v72
        s_lshl_b64 s[26:27], 1, s68
        v_mov_b32 v{VCN}, s26
        v_mov_b32 v{VCN+1}, s27
        s_lshl_b32 s26, s12, 5
        v_mov_b32 v0, s26
        v_mov_b32 v{HR}, -1
        v_mov_b32 v{HR+1}, -1
        v_mov_b32 v{HR+2}, -1
        v_mov_b32 v{HR+3}, -1
        """)

    def poison(self):
        d = R("v", HR)
        out = [f"global_store_dwordx4 v{VL}, {d}, s[{sb}:{sb+1}] offset:{o} sc0 sc1" for sb in (90, 92) for o in (0, 1024)]
        out += [f"global_store_dwordx4 v{VL}, {d}, s[94:95] offset:{o*1024 - 2048} sc0 sc1" for o in range(6)]
        out.append(f"global_store_dwordx4 v{VF0}, {d}, s[46:47] sc0 sc1")
        return [(t, "poison") for t in out]

    def wo_loads(self): return [self.frag("a", 4 * q, 56, q, "wo") for q in range(16)]
    def w1_loads(self): return [self.frag("a", 64 + 64 * k + 4 * q, 58 + 2 * k, q, "w1") for k in range(3) for q in range(16)]
    def w2_loads(self, lo, hi): return [self.frag(*w2reg(q), 64, q, ("w2", q // 2)) for q in range(lo, hi)]

    def attn(self):
        p = self.p; N = self.name
        self.base(20, 6, KV, [("s13", 131072)])
        p("s_lshl_b32 s17, s12, 2\ns_add_u32 s17, s17, s3")
        self.base(22, 6, QF, [("s13", 65536), ("s17", 2048)])
        p(f"""
        s_lshl_b32 s26, s3, 10
        v_add_u32 v{VF0}, s26, v{VL}
        s_lshr_b32 s24, s3, 1
        s_mul_i32 s24, s24, {SLOT}
        s_and_b32 s25, s3, 1
        s_lshl_b32 s25, s25, 10
        s_add_u32 m0, s24, s25
        v_add_u32 v{VF1}, 4096, v{VF0}
        """)
        p(f"global_load_lds_dwordx4 v{VF0}, s[20:21]", tag=("g", 0))
        p(f"global_load_dwordx4 {R('v', QA)}, v{VL}, s[22:23]", tag=("g", 0))
        p(f"global_load_dwordx4 {R('v', QB)}, v{VL}, s[22:23] offset:1024", tag=("g", 0))
        p(f"s_add_u32 m0, m0, {2*SLOT}\ns_mul_i32 s25, s3, {SLOT}\ns_lshl_b32 s26, s3, 11")
        p(f"global_load_lds_dwordx4 v{VF1}, s[20:21]", tag=("g", 2))
        p(f"v_add_u32 v{VC}, s26, v{VL+1}")
        G0 = self.opt.get("G0", 3)

        def grp(G):
            return [(f"s_add_u32 m0, s25, {G*4*SLOT}", None), (f"global_load_lds_dwordx4 v{VC}, s[20:21]", ("g", 4*G)),
                    (f"global_load_lds_dwordx4 v{VC}, s[20:21] offset:1024", ("g", 4*G)), (f"v_add_u32 v{VC}, 8192, v{VC}", None)]
        for G in range(1, G0):
            for t, tag in grp(G): p(t, tag=tag)
        p(f"""
        v_lshrrev_b32 v64, 4, v1
        s_lshl_b32 s26, s3, 4
        v_add_u32 v64, s26, v64
        v_mul_u32_u24 v64, {SLOT}, v64
        v_and_b32 v65, 15, v1
        v_lshl_add_u32 v64, v65, 4, v64
        v_and_b32 v68, 3, v1
        v_cmp_eq_u32 vcc, 0, v68
        v_mov_b32 v69, 0x3f803f80
        v_lshrrev_b32 v66, 5, v1
        v_cndmask_b32 v68, 0, v69, vcc
        v_mov_b32 v69, v68
        v_mov_b32 v70, v68
        v_mov_b32 v71, v68
        ds_write_b128 v64, v[68:71] offset:2048
        ds_write_b128 v64, v[68:71] offset:{2048 + 4*SLOT}
        ds_write_b128 v64, v[68:71] offset:{2048 + 8*SLOT}
        ds_write_b128 v64, v[68:71] offset:{2048 + 12*SLOT}
        v_lshlrev_b32 v66, 8, v66
        v_lshl_add_u32 v66, v65, 4, v66
        v_add_u32 v66, 1024, v66
        v_add_u32 v67, -4, v65
        v_cmp_gt_u32 vcc, 8, v67
        v_mov_b32 v67, 2048
        v_mov_b32 v72, {2048 + 64}
        v_cndmask_b32 v67, v67, v72, vcc
        v_and_b32 v72, 11, v65
        v_cmp_eq_u32 vcc, 0, v72
        v_add_u32 v72, 16, v67
        v_and_b32 v73, 16, v1
        v_cndmask_b32 v67, v72, v67, vcc
        v_cmp_eq_u32 vcc, 0, v73
        v_add_u32 v72, 512, v66
        v_mov_b32 v{VK}, v{VL}
        v_cndmask_b32 v{VV0}, v67, v66, vcc
        v_cndmask_b32 v{VV1}, v67, v72, vcc
        """)
        for wdw in (1, 2):
            for b in (VK, VV0, VV1): p(f"v_add_u32 v{b+wdw}, {wdw*28*SLOT}, v{b}")
        self.base(22, 6, OF, [("s13", 1024), ("s17", 65536)])
        self.bases()

        def rd(kind, t):
            wdw, off = divmod(t, 28)
            reg = {"K": KB, "V0": V0B, "V1": V1B}[kind][t % 2]
            adr = {"K": VK, "V0": VV0, "V1": VV1}[kind] + wdw
            return f"ds_read_b128 {R('v', reg)}, v{adr} offset:{off*SLOT}"
        t = p.wait_txt(vm=("g", 0))
        p(t + " lgkmcnt(0)\ns_barrier")
        self.stamp()
        p(rd("K", 0) + "\n" + rd("V0", 0) + "\n" + rd("V1", 0) + "\n" + rd("K", 1))
        p("s_waitcnt lgkmcnt(3)")
        p(m32(SA, KB[0], QA))
        p("s_waitcnt lgkmcnt(0)")
        slots = {}
        def put(t, name, items): slots.setdefault((t, name), []).extend(items)
        for G in range(G0, 16):
            g = grp(G); t0 = 2 * (G - G0)
            put(t0, "A19", [g[0]]); put(t0, "B12", [g[1]]); put(t0 + 1, "A19", [g[2], g[3]])
        bars = [2, 4, 8, 12, 24, 32, 64]
        for a, b in zip(bars[:-1], bars[1:]):
            put(a - 2, "B12", [("BAR", [("g", x) for x in range(a, b)] + (["poison"] if b == 64 else []))])
        po = self.poison()
        for k, t in enumerate((11, 13, 15, 17, 19, 21, 23, 25)):
            put(t, "B12", [po.pop(0) for _ in range(2 if k < 3 else 1)])
        assert not po
        put(31, "A19", [("ARRIVE", None)])
        put(54, "A19", [(f"global_load_dwordx2 v[{VCN}:{VCN+1}], v0, s[10:11] sc1", "cnt")])
        extra = self.wo_loads() + self.w1_loads() + self.w2_loads(0, 25)
        free = [(t, "B12") for t in range(1, 10, 2)] + [(t, n) for t in range(26, 61) for n in ("A19", "B12")]
        free = [f for f in free if f not in slots]
        dbl = len(extra) - len(free)
        for k, f in enumerate(free):
            put(f[0], f[1], [extra.pop(0) for _ in range(2 if 5 <= k < 5 + dbl else 1)])
        assert not extra

        def slot(t, name):
            for txt, tag in slots.get((t, name), []):
                if txt == "BAR":
                    p.wait(vm=tag); p("s_barrier")
                elif txt == "ARRIVE":
                    lab = self.lab()
                    p(f"""
                    s_cmp_lg_u32 s3, 0
                    s_cbranch_scc1 {lab}
                    s_mov_b64 exec, 1
                    global_atomic_add_x2 v0, v[{VCN}:{VCN+1}], s[10:11] sc1
                    s_mov_b64 exec, -1
                    {lab}:
                    """)
                    p.vm.pop()
                else:
                    if len(p.vm) >= 56 and txt.startswith("global"): p("s_waitcnt vmcnt(40)")
                    p(txt, tag=tag)

        for t in range(64):
            for X in "AB":
                S, O = (SA, OA) if X == "A" else (SB, OB)
                Sp, Op = (SB, OB) if X == "A" else (SA, OA)
                tp = t if X == "B" else t - 1
                first = (t == 0 and X == "A"); last = (t == 63 and X == "B")
                e = lambda i: p(f"v_exp_f32 v{S+i}, v{S+i}")
                c = lambda j: p(f"v_cvt_pk_bf16_f32 v{(P0 if j < 4 else P1) + j % 4}, v{S+2*j}, v{S+2*j+1}")
                e(0)
                if not first: p(f"v_cvt_pk_bf16_f32 v{P1+3}, v{Sp+14}, v{Sp+15}")
                e(1); e(2)
                if not first: p(m32(Op, V1B[tp % 2], P1, Op))
                if X == "A":
                    if t < 63: p(rd("V0", t + 1))
                else:
                    p("s_waitcnt lgkmcnt(0)")
                c(0); e(3); e(4); c(1); e(5); e(6)
                if X == "A":
                    p(m32(SB, KB[t % 2], QB))
                    if t < 63: p(rd("V1", t + 1))
                elif not last:
                    p(m32(SA, KB[(t + 1) % 2], QA))
                    slot(t, "B12")
                c(2); e(7); e(8); c(3); e(9); e(10)
                p(m32(O, V0B[t % 2], P0, None if t == 0 else O))
                if X == "A": slot(t, "A19")
                elif t < 62: p(rd("K", t + 2))
                c(4); e(11); e(12); c(5); e(13); e(14); c(6); e(15)
        T = TMP
        p.wait(vm="cnt")
        p(f"""
        v_cvt_pk_bf16_f32 v{P1+3}, v{SB+14}, v{SB+15}
        v_readfirstlane_b32 s26, v{VCN}
        v_readfirstlane_b32 s27, v{VCN+1}
        """)
        p(m32(OB, V1B[1], P1, OB))
        self.stamp()
        p(f"v_pk_mul_f32 v[{T}:{T+1}], v[{OA}:{OA+1}], 0 op_sel_hi:[1,0]")
        for r in (2, 4, 6): p(f"v_pk_fma_f32 v[{T}:{T+1}], v[{OA+r}:{OA+r+1}], 0, v[{T}:{T+1}] op_sel_hi:[1,0,1]")
        p(f"""
        v_rcp_f32 v{T+4}, v{OA+8}
        s_mov_b32 s66, 1
        s_lshr_b64 s[26:27], s[26:27], s68
        s_and_b32 s26, s26, 0xff
        s_cmp_eq_u32 s26, 32
        s_cbranch_scc0 {N}_MODE
        {N}_MODEB:
        """)
        self.ool.append(f"""{N}_MODE:
        v_sad_u8 v{T+2}, v{VCN}, 0, 0
        v_sad_u8 v{T+2}, v{VCN+1}, 0, v{T+2}
        v_readfirstlane_b32 s26, v{VCN}
        v_readfirstlane_b32 s27, v{VCN+1}
        v_readfirstlane_b32 s17, v{T+2}
        s_lshr_b64 s[26:27], s[26:27], s68
        s_and_b32 s26, s26, 0xff
        s_cmp_eq_u32 s26, 32
        s_cselect_b32 s66, 1, 0
        s_cmp_ge_u32 s17, 32
        s_cbranch_scc1 {N}_MODEB
        global_load_dwordx2 v[{VCN}:{VCN+1}], v0, s[10:11] sc1
        s_waitcnt vmcnt(0)
        s_sub_u32 s67, s67, 1
        s_cbranch_scc0 {N}_MODE
        s_mov_b32 s67, 0
        s_branch {N}_MODEB""")
        for r in (0, 2, 4, 6): p(f"v_pk_fma_f32 v[{T}:{T+1}], v[{OB+r}:{OB+r+1}], 0, v[{T}:{T+1}] op_sel_hi:[1,0,1]")
        p(f"""
        v_min_f32 v{T+2}, v{OA+8}, v{OB+8}
        v_max_f32 v{T+3}, v{OA+8}, v{OB+8}
        v_cmp_u_f32 s[26:27], v{T}, v{T+1}
        v_cmp_gt_f32 vcc, {f2h(2.0**-30)}, v{T+2}
        s_or_b64 s[26:27], s[26:27], vcc
        v_cmp_lt_f32 vcc, {f2h(2.0**60)}, v{T+3}
        s_or_b64 s[26:27], s[26:27], vcc
        s_cbranch_scc1 {N}_FB
    {N}_PUB:
        v_rcp_f32 v{T+6}, v{OB+8}
        """)
        for O, rr, vo in ((OA, T + 4, VL), (OB, T + 6, VL + 4)):
            for r in (0, 2, 4, 6): p(f"v_pk_mul_f32 v[{O+r}:{O+r+1}], v[{O+r}:{O+r+1}], v[{rr}:{rr+1}] op_sel_hi:[1,0]")
            for j in range(4): p(f"v_cvt_pk_bf16_f32 v{O+12+j}, v{O+2*j}, v{O+2*j+1}")
            p(f"v_min_u32 v{O+12}, -2, v{O+12}")
            p(self.pub_txt([f"global_store_dwordx4 v{vo}, {R('v', O+12)}, s[22:23]"]), tag="opub")

    def attn_fallback(self):
        p = self.p; N = self.name; T = TMP; A = V0B[1]
        p(f"{N}_FB:")
        for X, Q, O in (("A", QA, OA), ("B", QB, OB)):
            p(f"""
            v_mov_b32 v{P0}, 0xff800000
            v_mov_b32 v{A}, v{VK}
            s_mov_b32 s26, 64
        {N}_FB1{X}:
            ds_read_b128 {R('v', KB[0])}, v{A}
            v_add_u32 v{A}, {SLOT}, v{A}
            s_waitcnt lgkmcnt(0)
            """)
            p(m32(SA, KB[0], Q))
            for i in range(8): p(f"v_max3_f32 v{P0}, v{SA+2*i}, v{SA+2*i+1}, v{P0}")
            p(f"""
            s_sub_u32 s26, s26, 1
            s_cmp_lg_u32 s26, 0
            s_cbranch_scc1 {N}_FB1{X}
            v_mov_b32 v{P0+1}, v{P0}
            v_permlane32_swap_b32 v{P0}, v{P0+1}
            v_max_f32 v{P0}, v{P0}, v{P0+1}
            """)
            for i in range(16): p(f"v_sub_f32 v{SB+i}, 0, v{P0}\nv_mov_b32 v{O+i}, 0")
            p(f"""
            v_mov_b32 v{A}, v{VK}
            v_mov_b32 v{A+1}, v{VV0}
            v_mov_b32 v{A+2}, v{VV1}
            s_mov_b32 s26, 64
        {N}_FB2{X}:
            ds_read_b128 {R('v', KB[0])}, v{A}
            ds_read_b128 {R('v', V0B[0])}, v{A+1}
            ds_read_b128 {R('v', V1B[0])}, v{A+2}
            v_add_u32 v{A}, {SLOT}, v{A}
            v_add_u32 v{A+1}, {SLOT}, v{A+1}
            v_add_u32 v{A+2}, {SLOT}, v{A+2}
            s_waitcnt lgkmcnt(0)
            """)
            p(m32(SA, KB[0], Q, SB))
            for i in range(16): p(f"v_exp_f32 v{SA+i}, v{SA+i}")
            for j in range(8): p(f"v_cvt_pk_bf16_f32 v{P0+j}, v{SA+2*j}, v{SA+2*j+1}")
            p(m32(O, V0B[0], P0, O)); p(m32(O, V1B[0], P1, O))
            p(f"s_sub_u32 s26, s26, 1\ns_cmp_lg_u32 s26, 0\ns_cbranch_scc1 {N}_FB2{X}")
        p(f"v_rcp_f32 v{T+4}, v{OA+8}\ns_nop 7\ns_branch {N}_PUB")

    def post_setup(self):
        return f"""
        v_and_b32 v20, 31, v1
        v_lshrrev_b32 v22, 5, v1
        v_mul_u32_u24 v23, 272, v20
        v_lshl_add_u32 v23, v22, 4, v23
        s_mul_i32 s17, s3, 8704
        v_add_u32 v{VTW}, s17, v23
        s_sub_u32 s17, 21, s28
        v_min_u32 v20, s17, v20
        v_lshlrev_b32 v20, 10, v20
        v_lshl_add_u32 v{VPG}, v22, 9, v20
        v_lshrrev_b32 v20, 3, v1             ; tt
        v_and_b32 v22, 7, v1                 ; fc
        v_mul_u32_u24 v23, 272, v20
        v_lshl_add_u32 v23, v22, 5, v23
        s_mul_i32 s17, s3, {8*272}
        v_add_u32 v{VTR}, s17, v23
        v_lshlrev_b32 v{VSO}, 4, v20
        v_lshl_add_u32 v{VHO}, v22, 8, v{VSO}
        v_add_u32 v{VHO+1}, 32768, v{VHO}
        v_lshlrev_b32 v23, 10, v20
        v_lshl_add_u32 v{VXO}, v22, 4, v23
        v_add_u32 v{VXO+1}, 32768, v{VXO}
        s_lshl_b32 s17, s3, 12
        s_add_u32 s17, s17, {HL}
        v_add_u32 v{VHW}, s17, v{VL}
        v_add_u32 v{VHW+1}, {HL}, v{VL}
        v_lshlrev_b32 v20, 7, v20
        v_lshrrev_b32 v23, 1, v22
        v_lshl_add_u32 v20, v23, 10, v20
        v_and_b32 v22, 1, v22
        v_lshl_add_u32 v{VPS}, v22, 3, v20
        """

    def twrites(self, rt, acc):
        return [f"ds_write_b128 v{VTW}, {R('v', acc + 16*ct + 4*q)} offset:{TB + rt*TSTR + ct*128 + q*32}" for ct in range(2) for q in range(4)]

    def treads(self, rt, dst):
        return [(f"ds_read_b128 {R('v', dst + 8*w + 4*i)}, v{VTR} offset:{TB + rt*TSTR + w*8704 + 16*i}", ("tr", rt, w))
                for w in range(4) for i in range(2)]

    def tsum(self, rt, P, res, dst):
        U = 24; o = []
        pk = lambda d, a, b: [f"v_pk_add_f32 v[{d+r}:{d+r+1}], v[{a+r}:{a+r+1}], v[{b+r}:{b+r+1}]" for r in range(0, 8, 2)]
        for j in range(4):
            o += [f"v_lshlrev_b32 v{U+2*j}, 16, v{res+j}", f"v_and_b32 v{U+2*j+1}, 0xffff0000, v{res+j}"]
        o.append(("lg", ("tr", rt, 1))); o += pk(P, P, P + 8)
        o.append(("lg", ("tr", rt, 2))); o += pk(U, U, P + 16)
        o.append(("lg", ("tr", rt, 3))); o += pk(P, P, P + 24) + pk(P, P, U)
        o += [f"v_cvt_pk_bf16_f32 v{dst+j}, v{P+2*j}, v{P+2*j+1}" for j in range(4)]
        return o

    def emit(self, item, tag=None):
        if isinstance(item, tuple):
            if item[0] == "lg": self.p.wait(lg=item[1])
            elif item[0] == "vm": self.p.wait(vm=item[1])
            else: self.p(item[0], tag=item[1])
        elif callable(item): item()
        else: self.p(item, tag=tag)

    def wo(self):
        p = self.p
        B = (64, 96); ACC = (32, 64)
        poll = self.poll_ld(VPO, 34, -4096)
        p(poll, tag="poll")
        p("s_barrier")
        p(self.post_setup())
        for j in range(4): p(f"v_mov_b32 v{28+j}, s33")
        cs = [m16(CS + 4 * k, 64 + 64 * k + 4 * ks, 28, None if ks == 0 else CS + 4 * k, "a") for ks in range(16) for k in range(3)]
        p.wait(vm="w1")
        for _ in range(self.opt.get("cs0", 18)): p(cs.pop(0))
        self.poll_wait(poll)
        self.stamp()
        ld = lambda rt, k: f"global_load_dwordx4 {R('v', B[rt]+4*k)}, v{VL+4*rt}, s[34:35] offset:{k*1024-4096} sc1"
        for rt in range(2):
            for k in range(8):
                if cs: p(cs.pop(0))
                p(ld(rt, k), tag=("o", rt, k))
        for t in cs: p(t)
        mm = lambda rt, k, ct: m32(ACC[rt] + 16 * ct, 8 * k + 4 * ct, B[rt] + 4 * k, None if k == 0 else ACC[rt] + 16 * ct, "a")
        for rt in range(2):
            wr = self.twrites(0, ACC[0]) if rt else []
            for k in range(8):
                p.wait(vm=("o", rt, k))
                for ct in range(2):
                    p(mm(rt, k, ct))
                    if ct == 0 and k % 2:
                        p(f"v_max3_u32 v20, v{B[rt]+4*k}, v{B[rt]+4*k-4}, {'0' if k == 1 else 'v20'}")
                    elif wr and k >= 2: p(wr.pop(0), tag="tw0")
            assert not wr
            lab = self.lab()
            p(f"v_cmp_eq_u32 vcc, -1, v20\ns_cbranch_vccnz {lab}S\n{lab}B:")
            self.ool.append(f"{lab}S:\n" + self.verify_txt(VL + 4 * rt, 34, 8) + "\n".join(ld(rt, k) for k in range(8)) + "\ns_waitcnt vmcnt(0)\n" +
                            "\n".join(mm(rt, k, ct) for k in range(8) for ct in range(2)) + f"\ns_nop 7\ns_nop 3\ns_branch {lab}B")
        self.stamp()
        rest = self.w2_loads(25, 44)

        def epi(rt, P):
            h = HR + 4 * rt
            for it in self.tsum(rt, P, XR + 4 * rt, h): self.emit(it)
            p(f"v_min_u32 v{h}, -2, v{h}\nv_mov_b32 v20, 0\nv_mov_b32 v21, 0")
            p(self.pub_txt([f"global_store_dwordx4 v{VHO+rt}, {R('v', h)}, s[40:41]"]), tag="hpub")
            for j in range(4): p(f"v_dot2c_f32_bf16 v20, s33, v{h+j}\nv_dot2c_f32_bf16 v21, v{h+j}, v{h+j}")
            for d in ("quad_perm:[1,0,3,2]", "quad_perm:[2,3,0,1]", "row_half_mirror"):
                p(f"v_add_f32_dpp v20, v20, v20 {d} row_mask:0xf bank_mask:0xf\nv_add_f32_dpp v21, v21, v21 {d} row_mask:0xf bank_mask:0xf")
            p("v_min_u32 v20, -2, v20\ns_mov_b32 exec_lo, 0x01010101\ns_mov_b32 exec_hi, 0x01010101")
            p(self.pub_txt([f"global_store_dwordx2 v{VSO}, v[20:21], s[42:43] offset:{512*rt}"]), tag="hpub")
            p("s_mov_b64 exec, -1")
        p.wait(vm="x")
        p("s_waitcnt lgkmcnt(0)\ns_barrier")
        for it in self.treads(0, ACC[0]): self.emit(it)
        for t in self.twrites(1, ACC[1]): p(t, tag="tw1")
        epi(0, ACC[0])
        p("s_waitcnt lgkmcnt(0)\ns_barrier")
        for it in self.treads(1, ACC[1]): self.emit(it)
        for it in rest: self.emit(it)
        epi(1, ACC[1])

    def w1(self):
        p = self.p; N = self.name
        HS = 32
        SS = 80
        RS, NM = 20, 24
        ring = (124, 128, 132, 28)
        ACC = (96, 32)
        GP = 48
        TT = 108
        hld = lambda a: [(f"global_load_dwordx4 {R('v', HS+16*a+4*i)}, v{VL+2*a}, s[44:45] offset:{i*1024} sc1", ("h", a)) for i in range(4)]
        sld = [(f"global_load_dwordx4 {R('v', SS+4*jp)}, v{VL}, s[46:47] offset:{jp*1024} sc1", "st") for jp in range(4)]
        poll = self.poll_ld(VPS, 46, 0)

        def hwrite(a):
            b = HS + 16 * a
            chk = f"v_max3_u32 v0, v{b}, v{b+4}, v{b+8}\nv_max_u32 v0, v0, v{b+12}\nv_cmp_eq_u32 vcc, -1, v0"
            return [("vm", ("h", a)), self.retry([t for t, _ in hld(a)], chk)] + \
                   [(f"ds_write_b128 v{VHW}, {R('v', b+4*i)} offset:{a*16384 + i*1024}", ("hw", a)) for i in range(4)]
        for it in hld(0) + hld(1): self.emit(it)
        for it in hwrite(0): self.emit(it)
        p(poll, tag="poll")
        p("s_waitcnt lgkmcnt(0)\ns_barrier")
        self.stamp()

        def brd(s): return f"ds_read_b128 {R('v', ring[s % 4])}, v{VHW+1} offset:{s*1024}"
        for s in range(3): p(brd(s), tag=("b", s))
        chk = f"""v_max3_u32 v0, v{SS}, v{SS+2}, v{SS+4}
        v_max3_u32 v0, v0, v{SS+6}, v{SS+8}
        v_max3_u32 v0, v0, v{SS+10}, v{SS+12}
        v_max_u32 v0, v0, v{SS+14}
        v_cmp_eq_u32 vcc, -1, v0"""
        stats = [("vm", "st"), self.retry([t for t, _ in sld], chk)]
        stats += [f"v_pk_add_f32 v[{SS+4*jp}:{SS+4*jp+1}], v[{SS+4*jp}:{SS+4*jp+1}], v[{SS+4*jp+2}:{SS+4*jp+3}]" for jp in range(4)]
        stats += f"""v_pk_add_f32 v[{SS}:{SS+1}], v[{SS}:{SS+1}], v[{SS+4}:{SS+5}]
        v_pk_add_f32 v[{SS+8}:{SS+9}], v[{SS+8}:{SS+9}], v[{SS+12}:{SS+13}]
        v_pk_add_f32 v[{SS}:{SS+1}], v[{SS}:{SS+1}], v[{SS+8}:{SS+9}]
        v_mul_f32 v{SS}, {f2h(-1.0/512)}, v{SS}
        v_mul_f32 v{SS+1}, {f2h(1.0/512)}, v{SS+1}
        v_fma_f32 v{SS+1}, -v{SS}, v{SS}, v{SS+1}
        v_max_f32 v{SS+1}, 0, v{SS+1}
        v_add_f32 v{SS+1}, {f2h(1e-5)}, v{SS+1}
        v_rsq_f32 v{SS+1}, v{SS+1}
        v_mul_f32 v{RS}, s32, v{SS+1}
        v_mul_f32 v{NM}, v{SS}, v{RS}
        v_mov_b32 v{RS+2}, v{RS}
        v_mov_b32 v{NM+2}, v{NM}
        v_permlane32_swap_b32 v{RS}, v{RS+2}
        v_permlane32_swap_b32 v{NM}, v{NM+2}
        v_mov_b32 v{RS+1}, v{RS}
        v_mov_b32 v{RS+3}, v{RS+2}
        v_mov_b32 v{NM+1}, v{NM}
        v_mov_b32 v{NM+3}, v{NM+2}
        v_permlane16_swap_b32 v{RS}, v{RS+1}
        v_permlane16_swap_b32 v{RS+2}, v{RS+3}
        v_permlane16_swap_b32 v{NM}, v{NM+1}
        v_permlane16_swap_b32 v{NM+2}, v{NM+3}""".split("\n")

        def sel(base, a):
            lo = base + (a & ~1)
            return f"v[{lo}:{lo+1}]", a & 1

        def epi(a):
            out = []
            rs, b = sel(RS, a); nm, _ = sel(NM, a)
            for k in range(3):
                acc = ACC[a % 2] + 4 * k
                for h in range(2):
                    z = acc + 2 * h; t = TT + 2 * h
                    out.append(f"v_pk_mul_f32 v[{t}:{t+1}], v[{CS+4*k+2*h}:{CS+4*k+2*h+1}], {nm} op_sel:[0,{b}] op_sel_hi:[1,{b}]")
                    out.append(f"v_pk_fma_f32 v[{z}:{z+1}], v[{z}:{z+1}], {rs}, v[{t}:{t+1}] op_sel:[0,{b},0] op_sel_hi:[1,{b},1]")
                for h in range(2):
                    z = acc + 2 * h; t = TT + 2 * h
                    out += [f"v_exp_f32 v{t}, v{z}", f"v_exp_f32 v{t+1}, v{z+1}"]
                for h in range(2):
                    t = TT + 2 * h
                    out.append(f"v_pk_fma_f32 v[{t}:{t+1}], v[{t}:{t+1}], s[32:33], s[32:33] op_sel_hi:[1,0,0]")
                for i in range(4): out.append(f"v_rcp_f32 v{TT+i}, v{TT+i}")
                for h in range(2):
                    z = acc + 2 * h; t = TT + 2 * h
                    out.append(f"v_pk_mul_f32 v[{z}:{z+1}], v[{z}:{z+1}], v[{t}:{t+1}]")
                for h in range(2):
                    out.append(f"v_cvt_pk_bf16_f32 v{GP+4*k+2*(a%2)+h}, v{acc+2*h}, v{acc+2*h+1}")
                if a % 2:
                    g = GP + 4 * k; sb = 48 + 2 * (a // 2)
                    out += [f"v_permlane16_swap_b32 v{g}, v{g+2}", f"v_permlane16_swap_b32 v{g+1}, v{g+3}", f"v_min_u32 v{g}, -2, v{g}"]
                    st = self.pub_txt([f"global_store_dwordx4 v{VL+k}, {R('v', g)}, s[{sb}:{sb+1}]"])
                    if k == 2:
                        lab = self.lab()
                        st = f"s_cmp_lt_u32 s69, 22\ns_cbranch_scc0 {lab}\n{st}\n{lab}:"
                        out.append(lambda st=st: (p(st, tag="gpub"), p.vm.pop()))
                    else:
                        out.append((st, "gpub"))
            return out

        def cost(it):
            if isinstance(it, tuple):
                return 0 if it[0] in ("vm", "lg") else (1 if "\n" not in it[0] else 2)
            if callable(it): return 2
            if "\n" in it: return 2
            return 2 if it.strip().startswith(("v_exp", "v_rcp", "v_rsq")) else 1
        gld = lambda rt, n: self.frag("a", greg(rt, n), 52 + 2 * rt, n, ("gf", rt, n), " sc1")
        self.gld = gld
        for a in range(4):
            q = []
            if a == 0:
                q += [(1, lambda: self.poll_wait(poll))] + [(1, it) for it in sld + hld(2)]
                q += [(4, it) for it in hwrite(1)] + [(9, it) for it in stats]
            else:
                e = epi(a - 1)
                if a == 1: q += [(0, it) for it in hld(3)]
                if a < 3:
                    q += [(2, it) for it in e[:20]] + [(5, it) for it in hwrite(a + 1)] + [(5, it) for it in e[20:]]
                else:
                    q += [(2, it) for it in e]
            g0 = list(range(22)) if a == 3 else []
            for ks in range(16):
                s = 16 * a + ks
                if a < 3 and ks == 12:
                    assert not any(isinstance(it, tuple) and it[1] == ("hw", a + 1) for _, it in q)
                    p.wait(lg=("hw", a + 1)); p("s_barrier")
                p.wait(lg=("b", s))
                for k in range(3):
                    d = ACC[a % 2] + 4 * k
                    p(m16(d, 64 + 64 * k + 4 * ks, ring[s % 4], None if ks == 0 else d, "a"))
                    n = 2
                    if k == 0 and s + 3 < 64:
                        p(brd(s + 3), tag=("b", s + 3)); n = 1
                    if g0 and g0[0] // 3 < ks and k:
                        self.emit(gld(0, g0.pop(0))); n -= 1
                    while q and q[0][0] <= ks and n > 0:
                        it = q.pop(0)[1]; n -= cost(it); self.emit(it)
            for _, it in q: self.emit(it)
            assert not g0
        self.stamp()
        for it in epi(3): self.emit(it)

    def w2(self):
        p = self.p
        ACC = (32, 64)
        poll = self.poll_ld(VPG, 54, -4096)
        p(poll, tag="poll")

        def mm(rt, k, ct):
            ka, ra = w2reg(2 * k + ct); d = ACC[rt] + 16 * ct
            return m32(d, ra, greg(rt, k), None if k == 0 else d, ka, "a")

        def check(rt):
            lab = self.lab(); l2 = self.lab()
            body = "\n".join(mm(rt, k, ct) for k in range(21) for ct in range(2))
            self.ool.append(f"{lab}S:\ns_sub_u32 s26, 22, s28\n" + self.verify_txt(VL, 52 + 2 * rt, "s26") +
                            "\n".join(self.gld(rt, n)[0] for n in range(22)) + "\ns_waitcnt vmcnt(0)\n" + body +
                            f"\ns_cmp_ge_u32 s3, 2\ns_cbranch_scc1 {l2}\n{mm(rt, 21, 0)}\n{mm(rt, 21, 1)}\n{l2}:\ns_nop 7\ns_nop 3\ns_branch {lab}B")
            return f"v_cmp_u_f32 vcc, v{ACC[rt]}, v{ACC[rt]}\ns_cbranch_vccnz {lab}S\n{lab}B:"

        def epi(rt):
            return self.tsum(rt, ACC[rt], HR + 4 * rt, XR + 4 * rt) + [f"global_store_dwordx4 v{VXO+rt}, {R('v', XR+4*rt)}, s[38:39]"]
        PW = self.opt.get("pw", 7)
        for rt in range(2):
            if rt == 0:
                q = [(PW, lambda: self.poll_wait(poll))] + [(PW, self.gld(1, n)) for n in range(22)]
            else:
                q = [(4, check(0))] + [(4, (t, "tw0")) for t in self.twrites(0, ACC[0])]
                q += [(12, "s_waitcnt lgkmcnt(0)\ns_barrier")] + [(12, it) for it in self.treads(0, ACC[0])] + [(14, it) for it in epi(0)]
            for k in range(22):
                lab = None
                if k == 21:
                    for _, it in q: self.emit(it)
                    q = []
                    lab = self.lab()
                    p(f"s_cmp_ge_u32 s3, 2\ns_cbranch_scc1 {lab}")
                p.wait(vm=[("w2", k), ("gf", rt, k)])
                for ct in range(2):
                    p(mm(rt, k, ct))
                    n = 4
                    while q and q[0][0] <= k and n > 0:
                        it = q.pop(0)[1]; self.emit(it)
                        n -= 1 if isinstance(it, str) and it.startswith("v_") else (0 if isinstance(it, tuple) and it[0] in ("lg", "vm") else 4)
                if lab: p(f"{lab}:")
            if rt == 0: self.stamp()
        self.stamp()
        p(check(1))
        for t in self.twrites(1, ACC[1]): p(t, tag="tw1")
        p("s_waitcnt lgkmcnt(0)\ns_barrier")
        for it in self.treads(1, ACC[1]) + epi(1): self.emit(it)


def gen(opt, prof, upto):
    k = K2("k2", opt, prof, 1)
    k.prologue(); k.attn(); k.wo(); k.w1(); k.w2(); k.finish()
    k.attn_fallback()
    while k.ool:
        t = k.ool.pop(0); k.p(t)
    k.p("k2_LAST:")
    return [("k2_kernel", k.p, ATT_LDS, 256)]
```

```python
from asmlib import Prog
from layout import *

LOG2E = 1.4426950408889634
SLOT = 2304
ATT_LDS = 64 * SLOT
TB, TSTR, HL = 0, 34816, 69632

VL = 2
VC, VF0, VF1 = 9, 10, 11
VK, VV0, VV1 = 12, 15, 18
VPO = 21
VCN = 22
QA, QB = 24, 28
P0, P1 = 32, 36
VIX = 39
KB = (40, 44); V0B = (48, 56); V1B = (52, 60)
SA, SB, OA, OB = 64, 80, 96, 112
TMP = 40
W2V = 144
CS = 244
VTW, VTR, VXO, VHO, VSO, VHW, VPS, VPG = 9, 10, 11, 13, 15, 16, 18, 19
XR, HR = 128, 136


def R(k, a, n=4): return f"{k}[{a}:{a+n-1}]"


def m32(d, a, b, c=None, ka="v", kb="v"):
    cc = R("v", c, 16) if c is not None else "0"
    return f"v_mfma_f32_32x32x16_bf16 {R('v', d, 16)}, {R(ka, a)}, {R(kb, b)}, {cc}"


def m16(d, a, b, c=None, ka="v", kb="v"):
    cc = R("v", c) if c is not None else "0"
    return f"v_mfma_f32_16x16x32_bf16 {R('v', d)}, {R(ka, a)}, {R(kb, b)}, {cc}"


def sm(d, a, b):
    return f"v_smfmac_f32_32x32x32_bf16 {R('v', d, 16)}, {R('v', a)}, {R('v', b, 8)}, v{VIX}"


def w2reg(q):
    if q < 25: return ("v", W2V + 4 * q)
    if q < 28: return ("v", 112 + 4 * (q - 25))
    return ("a", 4 * (q - 28))


def greg(rt, n):
    m = 22 * rt + n
    return 64 + 64 * (m % 3) + 4 * (m // 3)


class K2:
    def __init__(self, name, opt, prof, pidx):
        self.p = Prog(); self.name = name; self.opt = opt; self.prof = prof; self.pidx = pidx
        self.nst = 0
        self.ool = []

    def stamp(self):
        if self.prof:
            op = "s_memrealtime" if self.opt.get("rt") else "s_memtime"
            self.p(f"{op} s[{70+2*self.nst}:{71+2*self.nst}]")
            self.nst += 1
            assert self.nst <= 10

    def lab(self): return f"{self.name}_{self.p.label()}"

    def base(self, sd, src, const, terms):
        p = self.p
        first = True
        for sreg, mult in terms:
            t = "s96" if first else "s97"
            if mult & (mult - 1) == 0: p(f"s_lshl_b32 {t}, {sreg}, {mult.bit_length()-1}")
            else: p(f"s_mul_i32 {t}, {sreg}, {mult}")
            if not first: p("s_add_u32 s96, s96, s97")
            first = False
        if const: p(f"s_add_u32 s96, s96, {const}")
        p(f"s_add_u32 s{sd}, s{src}, s96\ns_addc_u32 s{sd+1}, s{src+1}, 0")

    def frag(self, kind, reg, sb, q, tag, mods=""):
        return (f"global_load_dwordx4 {R(kind, reg)}, v{VL + q // 8}, s[{sb}:{sb+1}] offset:{(q % 8) * 1024 - 4096}{mods}", tag)

    def pub_txt(self, stores):
        lab = self.lab()
        self.ool.append(f"{lab}S:\n" + "\n".join(t + " sc0 sc1" for t in stores) + f"\ns_branch {lab}B")
        return f"s_cmp_eq_u32 s66, 0\ns_cbranch_scc1 {lab}S\n" + "\n".join(stores) + f"\n{lab}B:"

    def retry(self, loads, check):
        lab = self.lab()
        self.ool.append(f"{lab}S:\n" + "\n".join(loads) + f"""
        s_sub_u32 s67, s67, 1
        s_cbranch_scc1 {lab}X
        s_waitcnt vmcnt(0)
        {check}
        s_cbranch_vccnz {lab}S
        s_branch {lab}B
        {lab}X:
        s_mov_b32 s67, 0
        s_waitcnt vmcnt(0)
        s_branch {lab}B""")
        return f"{check}\ns_cbranch_vccnz {lab}S\n{lab}B:"

    def poll_ld(self, va, sb, off): return f"global_load_dword v0, v{va}, s[{sb}:{sb+1}] offset:{off} sc1"

    def poll_wait(self, ld):
        self.p.wait(vm="poll")
        self.p(self.retry([ld], "v_cmp_eq_u32 vcc, -1, v0"))

    def verify_txt(self, vstart, sb, n):
        lab = self.lab()
        return f"""
        v_mov_b32 v20, v{vstart}
        s_mov_b32 s17, {n}
        {lab}L:
        global_load_dword v0, v20, s[{sb}:{sb+1}] offset:-4096 sc1
        s_waitcnt vmcnt(0)
        v_cmp_eq_u32 vcc, -1, v0
        s_cbranch_vccz {lab}N
        s_sub_u32 s67, s67, 1
        s_cbranch_scc0 {lab}L
        s_mov_b32 s67, 0
        {lab}N:
        v_add_u32 v20, 1024, v20
        s_sub_u32 s17, s17, 1
        s_cmp_lg_u32 s17, 0
        s_cbranch_scc1 {lab}L
        """

    def prologue(self):
        p = self.p
        p(f"""
        s_cmp_ge_u32 s2, 256
        s_cbranch_scc1 {self.name}_END
        s_load_dwordx2 s[6:7], s[0:1], 64
        s_load_dwordx2 s[4:5], s[0:1], 0
        s_load_dwordx4 s[8:11], s[0:1], 48
        """)
        self.stamp()
        if self.prof: p("s_memrealtime s[98:99]")
        if self.opt.get("cw", 1):
            p(f"""
            s_getpc_b64 s[18:19]
        {self.name}_PC:
            s_lshr_b32 s17, s2, 3
            s_lshl_b32 s17, s17, 12
            v_lshl_add_u32 v2, v0, 4, s17
            v_min_u32 v2, {self.name}_LAST-{self.name}_PC-16, v2
            global_load_dwordx4 v[140:143], v2, s[18:19]
            """, tag="cw")
        p(f"""
        v_lshrrev_b32 v3, 6, v0
        v_and_b32 v1, 63, v0
        v_readfirstlane_b32 s3, v3
        s_and_b32 s12, s2, 7
        s_lshr_b32 s13, s2, 3
        s_lshr_b32 s14, s13, 3
        s_and_b32 s15, s13, 7
        s_lshl_b32 s16, s12, 2
        s_add_u32 s16, s16, s14
        v_lshlrev_b32 v{VL}, 4, v1
        """)
        for k in range(1, 7): p(f"v_add_u32 v{VL+k}, {8192*k}, v{VL}")
        p("s_waitcnt lgkmcnt(0)")

    def finish(self):
        p = self.p
        if self.prof:
            p("s_waitcnt vmcnt(0)")
            self.stamp()
            p("s_memrealtime s[100:101]")
            p("s_waitcnt lgkmcnt(0)")
            p("s_lshl_b32 s17, s2, 2\ns_add_u32 s17, s17, s3")
            self.base(18, 6, PROF + self.pidx * 65536, [("s17", 64)])
            p("v_mov_b32 v32, 0")
            for k in range(1, self.nst):
                p(f"s_sub_u32 s17, s{70+2*k}, s70\nv_mov_b32 v33, s17\nglobal_store_dword v32, v33, s[18:19] offset:{4*(k-1)}")
            p(f"s_sub_u32 s17, 0x100000, s67\nv_mov_b32 v33, s17\nglobal_store_dword v32, v33, s[18:19] offset:{4*(self.nst-1)}")
            p(f"s_sub_u32 s17, s100, s98\nv_mov_b32 v33, s17\nglobal_store_dword v32, v33, s[18:19] offset:56")
            p(f"v_mov_b32 v33, s98\nglobal_store_dword v32, v33, s[18:19] offset:60")
        p(f"{self.name}_END:\ns_endpgm")

    def bases(self):
        p = self.p
        p(f"""
        s_lshr_b32 s28, s3, 1
        s_and_b32 s29, s3, 1
        s_lshr_b32 s30, s15, 1
        s_and_b32 s31, s15, 1
        s_mov_b32 s32, {f2h(-LOG2E)}
        s_mov_b32 s33, 0x3f803f80
        s_lshl_b32 s69, s15, 2
        s_add_u32 s69, s69, s3               ; u = 4j + w
        s_mov_b32 s67, 0x100000
        s_getreg_b32 s68, hwreg(HW_REG_XCC_ID, 0, 3)
        s_lshl_b32 s68, s68, 3
        """)
        self.base(36, 4, 0, [("s16", 65536), ("s3", 8192), ("s15", 128)])
        p(f"""
        v_lshrrev_b32 v72, 3, v1
        v_and_b32 v73, 7, v1
        v_lshlrev_b32 v72, 10, v72
        v_lshl_add_u32 v72, v73, 4, v72
        v_add_u32 v73, 32768, v72
        """)
        for rt in range(2): p(f"global_load_dwordx4 {R('v', XR+4*rt)}, v{72+rt}, s[36:37]", tag="x")
        self.base(56, 6, WOF + 4096, [("s69", 16384)])
        self.base(58, 6, W1F + 4096, [("s69", 16384)])
        p(f"s_add_u32 s60, s58, {32*16384}\ns_addc_u32 s61, s59, 0\ns_add_u32 s62, s58, {64*16384}\ns_addc_u32 s63, s59, 0")
        self.base(64, 6, W2F + 4096, [("s69", 45056)])
        self.base(34, 6, OF + 4096, [("s16", 65536), ("s3", 8192)])
        self.base(38, 8, 0, [("s16", 65536), ("s3", 8192), ("s15", 128)])
        self.base(40, 6, HF, [("s16", 65536), ("s28", 16384), ("s29", 128), ("s15", 2048)])
        self.base(42, 6, ST, [("s16", 4096), ("s30", 1024), ("s31", 8), ("s3", 128)])
        self.base(44, 6, HF, [("s16", 65536), ("s3", 4096)])
        self.base(46, 6, ST, [("s16", 4096)])
        self.base(48, 6, GF, [("s16", 2 * 90112), ("s3", 22528), ("s15", 1024)])
        p("s_add_u32 s50, s48, 90112\ns_addc_u32 s51, s49, 0")
        self.base(52, 6, GF + 4096, [("s16", 2 * 90112), ("s3", 22528)])
        p("s_add_u32 s54, s52, 90112\ns_addc_u32 s55, s53, 0")
        self.base(90, 6, OF, [("s16", 65536), ("s69", 2048)])
        p(f"s_add_u32 s92, s90, {HF - OF}\ns_addc_u32 s93, s91, 0")
        p("s_mul_i32 s26, s69, 11\ns_lshr_b32 s26, s26, 1")
        self.base(94, 6, GF + 2048, [("s16", 2 * 90112), ("s26", 1024)])
        p(f"""
        v_and_b32 v72, 7, v1
        v_lshlrev_b32 v72, 10, v72
        v_bfe_u32 v73, v1, 3, 1
        v_lshl_add_u32 v72, v73, 15, v72
        v_lshrrev_b32 v73, 4, v1
        v_lshl_add_u32 v{VPO}, v73, 8, v72
        s_lshl_b64 s[26:27], 1, s68
        v_mov_b32 v{VCN}, s26
        v_mov_b32 v{VCN+1}, s27
        s_lshl_b32 s26, s12, 5
        v_mov_b32 v0, s26
        v_mov_b32 v{HR}, -1
        v_mov_b32 v{HR+1}, -1
        v_mov_b32 v{HR+2}, -1
        v_mov_b32 v{HR+3}, -1
        """)

    def poison(self):
        d = R("v", HR)
        out = [f"global_store_dwordx4 v{VL}, {d}, s[{sb}:{sb+1}] offset:{o} sc0 sc1" for sb in (90, 92) for o in (0, 1024)]
        out += [f"global_store_dwordx4 v{VL}, {d}, s[94:95] offset:{o*1024 - 2048} sc0 sc1" for o in range(6)]
        out.append(f"global_store_dwordx4 v{VF0}, {d}, s[46:47] sc0 sc1")
        return [(t, "poison") for t in out]

    def wo_loads(self): return [self.frag("a", 4 * q, 56, q, "wo") for q in range(16)]
    def w1_loads(self): return [self.frag("a", 64 + 64 * k + 4 * q, 58 + 2 * k, q, "w1") for k in range(3) for q in range(16)]
    def w2_loads(self, lo, hi): return [self.frag(*w2reg(q), 64, q, ("w2", q // 2)) for q in range(lo, hi)]

    def attn(self):
        p = self.p; N = self.name
        self.base(20, 6, KV, [("s13", 131072)])
        p("s_lshl_b32 s17, s12, 2\ns_add_u32 s17, s17, s3")
        self.base(22, 6, QF, [("s13", 65536), ("s17", 2048)])
        p(f"""
        s_lshl_b32 s26, s3, 10
        v_add_u32 v{VF0}, s26, v{VL}
        s_lshr_b32 s24, s3, 1
        s_mul_i32 s24, s24, {SLOT}
        s_and_b32 s25, s3, 1
        s_lshl_b32 s25, s25, 10
        s_add_u32 m0, s24, s25
        v_add_u32 v{VF1}, 4096, v{VF0}
        """)
        p(f"global_load_lds_dwordx4 v{VF0}, s[20:21]", tag=("g", 0))
        p(f"global_load_dwordx4 {R('v', QA)}, v{VL}, s[22:23]", tag=("g", 0))
        p(f"global_load_dwordx4 {R('v', QB)}, v{VL}, s[22:23] offset:1024", tag=("g", 0))
        p(f"s_add_u32 m0, m0, {2*SLOT}\ns_mul_i32 s25, s3, {SLOT}\ns_lshl_b32 s26, s3, 11")
        p(f"global_load_lds_dwordx4 v{VF1}, s[20:21]", tag=("g", 2))
        p(f"v_add_u32 v{VC}, s26, v{VL+1}")
        G0 = self.opt.get("G0", 3)

        def grp(G):
            return [(f"s_add_u32 m0, s25, {G*4*SLOT}", None), (f"global_load_lds_dwordx4 v{VC}, s[20:21]", ("g", 4*G)),
                    (f"global_load_lds_dwordx4 v{VC}, s[20:21] offset:1024", ("g", 4*G)), (f"v_add_u32 v{VC}, 8192, v{VC}", None)]
        for G in range(1, G0):
            for t, tag in grp(G): p(t, tag=tag)
        p(f"""
        v_lshrrev_b32 v64, 4, v1
        s_lshl_b32 s26, s3, 4
        v_add_u32 v64, s26, v64
        v_mul_u32_u24 v64, {SLOT}, v64
        v_and_b32 v65, 15, v1
        v_lshl_add_u32 v64, v65, 4, v64
        v_and_b32 v68, 3, v1
        v_cmp_eq_u32 vcc, 0, v68
        v_mov_b32 v69, 0x3f803f80
        v_lshrrev_b32 v66, 5, v1
        v_cndmask_b32 v68, 0, v69, vcc
        v_mov_b32 v69, v68
        v_mov_b32 v70, v68
        v_mov_b32 v71, v68
        ds_write_b128 v64, v[68:71] offset:2048
        ds_write_b128 v64, v[68:71] offset:{2048 + 4*SLOT}
        ds_write_b128 v64, v[68:71] offset:{2048 + 8*SLOT}
        ds_write_b128 v64, v[68:71] offset:{2048 + 12*SLOT}
        v_lshlrev_b32 v66, 8, v66
        v_lshl_add_u32 v66, v65, 4, v66
        v_add_u32 v66, 1024, v66
        v_add_u32 v67, -4, v65
        v_cmp_gt_u32 vcc, 8, v67
        v_mov_b32 v67, 2048
        v_mov_b32 v72, {2048 + 64}
        v_cndmask_b32 v67, v67, v72, vcc
        v_and_b32 v72, 11, v65
        v_cmp_eq_u32 vcc, 0, v72
        v_add_u32 v72, 16, v67
        v_and_b32 v73, 16, v1
        v_cndmask_b32 v67, v72, v67, vcc
        v_cmp_eq_u32 vcc, 0, v73
        v_add_u32 v72, 512, v66
        v_mov_b32 v{VK}, v{VL}
        v_cndmask_b32 v{VV0}, v67, v66, vcc
        v_cndmask_b32 v{VV1}, v67, v72, vcc
        """)
        for wdw in (1, 2):
            for b in (VK, VV0, VV1): p(f"v_add_u32 v{b+wdw}, {wdw*28*SLOT}, v{b}")
        self.base(22, 6, OF, [("s13", 1024), ("s17", 65536)])
        self.bases()
        p(f"v_mov_b32 v{VIX}, 0xdddddddd")
        for r in range(32): p(f"v_mov_b32 v{OA+r}, 0")

        def rd(kind, t):
            wdw, off = divmod(t, 28)
            reg = {"K": KB, "V0": V0B, "V1": V1B}[kind][t % 2]
            adr = {"K": VK, "V0": VV0, "V1": VV1}[kind] + wdw
            return f"ds_read_b128 {R('v', reg)}, v{adr} offset:{off*SLOT}"
        t = p.wait_txt(vm=("g", 0))
        p(t + " lgkmcnt(0)\ns_barrier")
        self.stamp()
        p(rd("K", 0) + "\n" + rd("V0", 0) + "\n" + rd("V1", 0) + "\n" + rd("K", 1))
        p("s_waitcnt lgkmcnt(3)")
        p(m32(SA, KB[0], QA))
        p("s_waitcnt lgkmcnt(0)")
        slots = {}
        def put(t, name, items): slots.setdefault((t, name), []).extend(items)
        for G in range(G0, 16):
            g = grp(G); t0 = 2 * (G - G0)
            put(t0, "A19", [g[0]]); put(t0, "B12", [g[1]]); put(t0 + 1, "A19", [g[2], g[3]])
        bars = [2, 4, 8, 12, 24, 32, 64]
        for a, b in zip(bars[:-1], bars[1:]):
            put(a - 2, "B12", [("BAR", [("g", x) for x in range(a, b)] + (["poison"] if b == 64 else []))])
        po = self.poison()
        for k, t in enumerate((11, 13, 15, 17, 19, 21, 23, 25)):
            put(t, "B12", [po.pop(0) for _ in range(2 if k < 3 else 1)])
        assert not po
        put(31, "A19", [("ARRIVE", None)])
        put(54, "A19", [(f"global_load_dwordx2 v[{VCN}:{VCN+1}], v0, s[10:11] sc1", "cnt")])
        extra = self.wo_loads() + self.w1_loads() + self.w2_loads(0, 25)
        free = [(t, "B12") for t in range(1, 10, 2)] + [(t, n) for t in range(26, 61) for n in ("A19", "B12")]
        free = [f for f in free if f not in slots]
        dbl = len(extra) - len(free)
        for k, f in enumerate(free):
            put(f[0], f[1], [extra.pop(0) for _ in range(2 if 5 <= k < 5 + dbl else 1)])
        assert not extra

        def slot(t, name):
            for txt, tag in slots.get((t, name), []):
                if txt == "BAR":
                    p.wait(vm=tag); p("s_barrier")
                elif txt == "ARRIVE":
                    lab = self.lab()
                    p(f"""
                    s_cmp_lg_u32 s3, 0
                    s_cbranch_scc1 {lab}
                    s_mov_b64 exec, 1
                    global_atomic_add_x2 v0, v[{VCN}:{VCN+1}], s[10:11] sc1
                    s_mov_b64 exec, -1
                    {lab}:
                    """)
                    p.vm.pop()
                else:
                    if len(p.vm) >= 56 and txt.startswith("global"): p("s_waitcnt vmcnt(40)")
                    p(txt, tag=tag)

        for t in range(64):
            for X in "AB":
                S, O = (SA, OA) if X == "A" else (SB, OB)
                Sp, Op = (SB, OB) if X == "A" else (SA, OA)
                tp = t if X == "B" else t - 1
                first = (t == 0 and X == "A"); last = (t == 63 and X == "B")
                pos = (2, 5, 10)
                for i in range(16):
                    if i == pos[0]:
                        if not first: p(sm(Op, V1B[tp % 2], Sp + 8))
                        if X == "A":
                            if t < 63: p(rd("V0", t + 1))
                        else:
                            p("s_waitcnt lgkmcnt(0)")
                    if i == pos[1]:
                        if X == "A":
                            p(m32(SB, KB[t % 2], QB))
                            if t < 63: p(rd("V1", t + 1))
                        elif not last:
                            p(m32(SA, KB[(t + 1) % 2], QA))
                            slot(t, "B12")
                    if i == pos[2]:
                        p(sm(O, V0B[t % 2], S))
                        if X == "A": slot(t, "A19")
                        elif t < 62: p(rd("K", t + 2))
                    p(f"v_exp_f32 v{S+i}, v{S+i}")
        T = TMP
        p.wait(vm="cnt")
        p(f"""
        v_readfirstlane_b32 s26, v{VCN}
        v_readfirstlane_b32 s27, v{VCN+1}
        """)
        p(sm(OB, V1B[1], SB + 8))
        self.stamp()
        p(f"v_pk_mul_f32 v[{T}:{T+1}], v[{OA}:{OA+1}], 0 op_sel_hi:[1,0]")
        for r in (2, 4, 6): p(f"v_pk_fma_f32 v[{T}:{T+1}], v[{OA+r}:{OA+r+1}], 0, v[{T}:{T+1}] op_sel_hi:[1,0,1]")
        p(f"""
        v_rcp_f32 v{T+4}, v{OA+8}
        s_mov_b32 s66, 1
        s_lshr_b64 s[26:27], s[26:27], s68
        s_and_b32 s26, s26, 0xff
        s_cmp_eq_u32 s26, 32
        s_cbranch_scc0 {N}_MODE
        {N}_MODEB:
        """)
        self.ool.append(f"""{N}_MODE:
        v_sad_u8 v{T+2}, v{VCN}, 0, 0
        v_sad_u8 v{T+2}, v{VCN+1}, 0, v{T+2}
        v_readfirstlane_b32 s26, v{VCN}
        v_readfirstlane_b32 s27, v{VCN+1}
        v_readfirstlane_b32 s17, v{T+2}
        s_lshr_b64 s[26:27], s[26:27], s68
        s_and_b32 s26, s26, 0xff
        s_cmp_eq_u32 s26, 32
        s_cselect_b32 s66, 1, 0
        s_cmp_ge_u32 s17, 32
        s_cbranch_scc1 {N}_MODEB
        global_load_dwordx2 v[{VCN}:{VCN+1}], v0, s[10:11] sc1
        s_waitcnt vmcnt(0)
        s_sub_u32 s67, s67, 1
        s_cbranch_scc0 {N}_MODE
        s_mov_b32 s67, 0
        s_branch {N}_MODEB""")
        for r in (0, 2, 4, 6): p(f"v_pk_fma_f32 v[{T}:{T+1}], v[{OB+r}:{OB+r+1}], 0, v[{T}:{T+1}] op_sel_hi:[1,0,1]")
        p(f"""
        v_min_f32 v{T+2}, v{OA+8}, v{OB+8}
        v_max_f32 v{T+3}, v{OA+8}, v{OB+8}
        v_cmp_u_f32 s[26:27], v{T}, v{T+1}
        v_cmp_gt_f32 vcc, {f2h(2.0**-30)}, v{T+2}
        s_or_b64 s[26:27], s[26:27], vcc
        v_cmp_lt_f32 vcc, {f2h(2.0**60)}, v{T+3}
        s_or_b64 s[26:27], s[26:27], vcc
        s_cbranch_scc1 {N}_FB
    {N}_PUB:
        v_rcp_f32 v{T+6}, v{OB+8}
        """)
        for O, rr, vo in ((OA, T + 4, VL), (OB, T + 6, VL + 4)):
            for r in (0, 2, 4, 6): p(f"v_pk_mul_f32 v[{O+r}:{O+r+1}], v[{O+r}:{O+r+1}], v[{rr}:{rr+1}] op_sel_hi:[1,0]")
            for j in range(4): p(f"v_cvt_pk_bf16_f32 v{O+12+j}, v{O+2*j}, v{O+2*j+1}")
            p(f"v_min_u32 v{O+12}, -2, v{O+12}")
            p(self.pub_txt([f"global_store_dwordx4 v{vo}, {R('v', O+12)}, s[22:23]"]), tag="opub")

    def attn_fallback(self):
        p = self.p; N = self.name; T = TMP; A = V0B[1]
        p(f"{N}_FB:")
        for X, Q, O in (("A", QA, OA), ("B", QB, OB)):
            p(f"""
            v_mov_b32 v{P0}, 0xff800000
            v_mov_b32 v{A}, v{VK}
            s_mov_b32 s26, 64
        {N}_FB1{X}:
            ds_read_b128 {R('v', KB[0])}, v{A}
            v_add_u32 v{A}, {SLOT}, v{A}
            s_waitcnt lgkmcnt(0)
            """)
            p(m32(SA, KB[0], Q))
            for i in range(8): p(f"v_max3_f32 v{P0}, v{SA+2*i}, v{SA+2*i+1}, v{P0}")
            p(f"""
            s_sub_u32 s26, s26, 1
            s_cmp_lg_u32 s26, 0
            s_cbranch_scc1 {N}_FB1{X}
            v_mov_b32 v{P0+1}, v{P0}
            v_permlane32_swap_b32 v{P0}, v{P0+1}
            v_max_f32 v{P0}, v{P0}, v{P0+1}
            """)
            for i in range(16): p(f"v_sub_f32 v{SB+i}, 0, v{P0}\nv_mov_b32 v{O+i}, 0")
            p(f"""
            v_mov_b32 v{A}, v{VK}
            v_mov_b32 v{A+1}, v{VV0}
            v_mov_b32 v{A+2}, v{VV1}
            s_mov_b32 s26, 64
        {N}_FB2{X}:
            ds_read_b128 {R('v', KB[0])}, v{A}
            ds_read_b128 {R('v', V0B[0])}, v{A+1}
            ds_read_b128 {R('v', V1B[0])}, v{A+2}
            v_add_u32 v{A}, {SLOT}, v{A}
            v_add_u32 v{A+1}, {SLOT}, v{A+1}
            v_add_u32 v{A+2}, {SLOT}, v{A+2}
            s_waitcnt lgkmcnt(0)
            """)
            p(m32(SA, KB[0], Q, SB))
            for i in range(16): p(f"v_exp_f32 v{SA+i}, v{SA+i}")
            p(sm(O, V0B[0], SA)); p(sm(O, V1B[0], SA + 8))
            p(f"s_sub_u32 s26, s26, 1\ns_cmp_lg_u32 s26, 0\ns_cbranch_scc1 {N}_FB2{X}")
        p(f"v_rcp_f32 v{T+4}, v{OA+8}\ns_nop 7\ns_branch {N}_PUB")

    def post_setup(self):
        return f"""
        v_and_b32 v20, 31, v1
        v_lshrrev_b32 v22, 5, v1
        v_mul_u32_u24 v23, 272, v20
        v_lshl_add_u32 v23, v22, 4, v23
        s_mul_i32 s17, s3, 8704
        v_add_u32 v{VTW}, s17, v23
        s_sub_u32 s17, 21, s28
        v_min_u32 v20, s17, v20
        v_lshlrev_b32 v20, 10, v20
        v_lshl_add_u32 v{VPG}, v22, 9, v20
        v_lshrrev_b32 v20, 3, v1             ; tt
        v_and_b32 v22, 7, v1                 ; fc
        v_mul_u32_u24 v23, 272, v20
        v_lshl_add_u32 v23, v22, 5, v23
        s_mul_i32 s17, s3, {8*272}
        v_add_u32 v{VTR}, s17, v23
        v_lshlrev_b32 v{VSO}, 4, v20
        v_lshl_add_u32 v{VHO}, v22, 8, v{VSO}
        v_add_u32 v{VHO+1}, 32768, v{VHO}
        v_lshlrev_b32 v23, 10, v20
        v_lshl_add_u32 v{VXO}, v22, 4, v23
        v_add_u32 v{VXO+1}, 32768, v{VXO}
        s_lshl_b32 s17, s3, 12
        s_add_u32 s17, s17, {HL}
        v_add_u32 v{VHW}, s17, v{VL}
        v_add_u32 v{VHW+1}, {HL}, v{VL}
        v_lshlrev_b32 v20, 7, v20
        v_lshrrev_b32 v23, 1, v22
        v_lshl_add_u32 v20, v23, 10, v20
        v_and_b32 v22, 1, v22
        v_lshl_add_u32 v{VPS}, v22, 3, v20
        """

    def twrites(self, rt, acc):
        return [f"ds_write_b128 v{VTW}, {R('v', acc + 16*ct + 4*q)} offset:{TB + rt*TSTR + ct*128 + q*32}" for ct in range(2) for q in range(4)]

    def treads(self, rt, dst):
        return [(f"ds_read_b128 {R('v', dst + 8*w + 4*i)}, v{VTR} offset:{TB + rt*TSTR + w*8704 + 16*i}", ("tr", rt, w))
                for w in range(4) for i in range(2)]

    def tsum(self, rt, P, res, dst):
        U = 24; o = []
        pk = lambda d, a, b: [f"v_pk_add_f32 v[{d+r}:{d+r+1}], v[{a+r}:{a+r+1}], v[{b+r}:{b+r+1}]" for r in range(0, 8, 2)]
        for j in range(4):
            o += [f"v_lshlrev_b32 v{U+2*j}, 16, v{res+j}", f"v_and_b32 v{U+2*j+1}, 0xffff0000, v{res+j}"]
        o.append(("lg", ("tr", rt, 1))); o += pk(P, P, P + 8)
        o.append(("lg", ("tr", rt, 2))); o += pk(U, U, P + 16)
        o.append(("lg", ("tr", rt, 3))); o += pk(P, P, P + 24) + pk(P, P, U)
        o += [f"v_cvt_pk_bf16_f32 v{dst+j}, v{P+2*j}, v{P+2*j+1}" for j in range(4)]
        return o

    def emit(self, item, tag=None):
        if isinstance(item, tuple):
            if item[0] == "lg": self.p.wait(lg=item[1])
            elif item[0] == "vm": self.p.wait(vm=item[1])
            else: self.p(item[0], tag=item[1])
        elif callable(item): item()
        else: self.p(item, tag=tag)

    def wo(self):
        p = self.p
        B = (64, 96); ACC = (32, 64)
        poll = self.poll_ld(VPO, 34, -4096)
        p(poll, tag="poll")
        p("s_barrier")
        p(self.post_setup())
        for j in range(4): p(f"v_mov_b32 v{28+j}, s33")
        cs = [m16(CS + 4 * k, 64 + 64 * k + 4 * ks, 28, None if ks == 0 else CS + 4 * k, "a") for ks in range(16) for k in range(3)]
        p.wait(vm="w1")
        for _ in range(self.opt.get("cs0", 18)): p(cs.pop(0))
        self.poll_wait(poll)
        self.stamp()
        ld = lambda rt, k: f"global_load_dwordx4 {R('v', B[rt]+4*k)}, v{VL+4*rt}, s[34:35] offset:{k*1024-4096} sc1"
        for rt in range(2):
            for k in range(8):
                if cs: p(cs.pop(0))
                p(ld(rt, k), tag=("o", rt, k))
        for t in cs: p(t)
        mm = lambda rt, k, ct: m32(ACC[rt] + 16 * ct, 8 * k + 4 * ct, B[rt] + 4 * k, None if k == 0 else ACC[rt] + 16 * ct, "a")
        for rt in range(2):
            wr = self.twrites(0, ACC[0]) if rt else []
            for k in range(8):
                p.wait(vm=("o", rt, k))
                for ct in range(2):
                    p(mm(rt, k, ct))
                    if ct == 0 and k % 2:
                        p(f"v_max3_u32 v20, v{B[rt]+4*k}, v{B[rt]+4*k-4}, {'0' if k == 1 else 'v20'}")
                    elif wr and k >= 2: p(wr.pop(0), tag="tw0")
            assert not wr
            lab = self.lab()
            p(f"v_cmp_eq_u32 vcc, -1, v20\ns_cbranch_vccnz {lab}S\n{lab}B:")
            self.ool.append(f"{lab}S:\n" + self.verify_txt(VL + 4 * rt, 34, 8) + "\n".join(ld(rt, k) for k in range(8)) + "\ns_waitcnt vmcnt(0)\n" +
                            "\n".join(mm(rt, k, ct) for k in range(8) for ct in range(2)) + f"\ns_nop 7\ns_nop 3\ns_branch {lab}B")
        self.stamp()
        rest = self.w2_loads(25, 44)

        def epi(rt, P):
            h = HR + 4 * rt
            for it in self.tsum(rt, P, XR + 4 * rt, h): self.emit(it)
            p(f"v_min_u32 v{h}, -2, v{h}\nv_mov_b32 v20, 0\nv_mov_b32 v21, 0")
            p(self.pub_txt([f"global_store_dwordx4 v{VHO+rt}, {R('v', h)}, s[40:41]"]), tag="hpub")
            for j in range(4): p(f"v_dot2c_f32_bf16 v20, s33, v{h+j}\nv_dot2c_f32_bf16 v21, v{h+j}, v{h+j}")
            for d in ("quad_perm:[1,0,3,2]", "quad_perm:[2,3,0,1]", "row_half_mirror"):
                p(f"v_add_f32_dpp v20, v20, v20 {d} row_mask:0xf bank_mask:0xf\nv_add_f32_dpp v21, v21, v21 {d} row_mask:0xf bank_mask:0xf")
            p("v_min_u32 v20, -2, v20\ns_mov_b32 exec_lo, 0x01010101\ns_mov_b32 exec_hi, 0x01010101")
            p(self.pub_txt([f"global_store_dwordx2 v{VSO}, v[20:21], s[42:43] offset:{512*rt}"]), tag="hpub")
            p("s_mov_b64 exec, -1")
        p.wait(vm="x")
        p("s_waitcnt lgkmcnt(0)\ns_barrier")
        for it in self.treads(0, ACC[0]): self.emit(it)
        for t in self.twrites(1, ACC[1]): p(t, tag="tw1")
        epi(0, ACC[0])
        p("s_waitcnt lgkmcnt(0)\ns_barrier")
        for it in self.treads(1, ACC[1]): self.emit(it)
        for it in rest: self.emit(it)
        epi(1, ACC[1])

    def w1(self):
        p = self.p; N = self.name
        HS = 32
        SS = 80
        RS, NM = 20, 24
        ring = (124, 128, 132, 28)
        ACC = (96, 32)
        GP = 48
        TT = 108
        hld = lambda a: [(f"global_load_dwordx4 {R('v', HS+16*a+4*i)}, v{VL+2*a}, s[44:45] offset:{i*1024} sc1", ("h", a)) for i in range(4)]
        sld = [(f"global_load_dwordx4 {R('v', SS+4*jp)}, v{VL}, s[46:47] offset:{jp*1024} sc1", "st") for jp in range(4)]
        poll = self.poll_ld(VPS, 46, 0)

        def hwrite(a):
            b = HS + 16 * a
            chk = f"v_max3_u32 v0, v{b}, v{b+4}, v{b+8}\nv_max_u32 v0, v0, v{b+12}\nv_cmp_eq_u32 vcc, -1, v0"
            return [("vm", ("h", a)), self.retry([t for t, _ in hld(a)], chk)] + \
                   [(f"ds_write_b128 v{VHW}, {R('v', b+4*i)} offset:{a*16384 + i*1024}", ("hw", a)) for i in range(4)]
        for it in hld(0) + hld(1): self.emit(it)
        for it in hwrite(0): self.emit(it)
        p(poll, tag="poll")
        p("s_waitcnt lgkmcnt(0)\ns_barrier")
        self.stamp()

        def brd(s): return f"ds_read_b128 {R('v', ring[s % 4])}, v{VHW+1} offset:{s*1024}"
        for s in range(3): p(brd(s), tag=("b", s))
        chk = f"""v_max3_u32 v0, v{SS}, v{SS+2}, v{SS+4}
        v_max3_u32 v0, v0, v{SS+6}, v{SS+8}
        v_max3_u32 v0, v0, v{SS+10}, v{SS+12}
        v_max_u32 v0, v0, v{SS+14}
        v_cmp_eq_u32 vcc, -1, v0"""
        stats = [("vm", "st"), self.retry([t for t, _ in sld], chk)]
        stats += [f"v_pk_add_f32 v[{SS+4*jp}:{SS+4*jp+1}], v[{SS+4*jp}:{SS+4*jp+1}], v[{SS+4*jp+2}:{SS+4*jp+3}]" for jp in range(4)]
        stats += f"""v_pk_add_f32 v[{SS}:{SS+1}], v[{SS}:{SS+1}], v[{SS+4}:{SS+5}]
        v_pk_add_f32 v[{SS+8}:{SS+9}], v[{SS+8}:{SS+9}], v[{SS+12}:{SS+13}]
        v_pk_add_f32 v[{SS}:{SS+1}], v[{SS}:{SS+1}], v[{SS+8}:{SS+9}]
        v_mul_f32 v{SS}, {f2h(-1.0/512)}, v{SS}
        v_mul_f32 v{SS+1}, {f2h(1.0/512)}, v{SS+1}
        v_fma_f32 v{SS+1}, -v{SS}, v{SS}, v{SS+1}
        v_max_f32 v{SS+1}, 0, v{SS+1}
        v_add_f32 v{SS+1}, {f2h(1e-5)}, v{SS+1}
        v_rsq_f32 v{SS+1}, v{SS+1}
        v_mul_f32 v{RS}, s32, v{SS+1}
        v_mul_f32 v{NM}, v{SS}, v{RS}
        v_mov_b32 v{RS+2}, v{RS}
        v_mov_b32 v{NM+2}, v{NM}
        v_permlane32_swap_b32 v{RS}, v{RS+2}
        v_permlane32_swap_b32 v{NM}, v{NM+2}
        v_mov_b32 v{RS+1}, v{RS}
        v_mov_b32 v{RS+3}, v{RS+2}
        v_mov_b32 v{NM+1}, v{NM}
        v_mov_b32 v{NM+3}, v{NM+2}
        v_permlane16_swap_b32 v{RS}, v{RS+1}
        v_permlane16_swap_b32 v{RS+2}, v{RS+3}
        v_permlane16_swap_b32 v{NM}, v{NM+1}
        v_permlane16_swap_b32 v{NM+2}, v{NM+3}""".split("\n")

        def sel(base, a):
            lo = base + (a & ~1)
            return f"v[{lo}:{lo+1}]", a & 1

        def epi(a):
            out = []
            rs, b = sel(RS, a); nm, _ = sel(NM, a)
            for k in range(3):
                acc = ACC[a % 2] + 4 * k
                for h in range(2):
                    z = acc + 2 * h; t = TT + 2 * h
                    out.append(f"v_pk_mul_f32 v[{t}:{t+1}], v[{CS+4*k+2*h}:{CS+4*k+2*h+1}], {nm} op_sel:[0,{b}] op_sel_hi:[1,{b}]")
                    out.append(f"v_pk_fma_f32 v[{z}:{z+1}], v[{z}:{z+1}], {rs}, v[{t}:{t+1}] op_sel:[0,{b},0] op_sel_hi:[1,{b},1]")
                for h in range(2):
                    z = acc + 2 * h; t = TT + 2 * h
                    out += [f"v_exp_f32 v{t}, v{z}", f"v_exp_f32 v{t+1}, v{z+1}"]
                for h in range(2):
                    t = TT + 2 * h
                    out.append(f"v_pk_fma_f32 v[{t}:{t+1}], v[{t}:{t+1}], s[32:33], s[32:33] op_sel_hi:[1,0,0]")
                for i in range(4): out.append(f"v_rcp_f32 v{TT+i}, v{TT+i}")
                for h in range(2):
                    z = acc + 2 * h; t = TT + 2 * h
                    out.append(f"v_pk_mul_f32 v[{z}:{z+1}], v[{z}:{z+1}], v[{t}:{t+1}]")
                for h in range(2):
                    out.append(f"v_cvt_pk_bf16_f32 v{GP+4*k+2*(a%2)+h}, v{acc+2*h}, v{acc+2*h+1}")
                if a % 2:
                    g = GP + 4 * k; sb = 48 + 2 * (a // 2)
                    out += [f"v_permlane16_swap_b32 v{g}, v{g+2}", f"v_permlane16_swap_b32 v{g+1}, v{g+3}", f"v_min_u32 v{g}, -2, v{g}"]
                    st = self.pub_txt([f"global_store_dwordx4 v{VL+k}, {R('v', g)}, s[{sb}:{sb+1}]"])
                    if k == 2:
                        lab = self.lab()
                        st = f"s_cmp_lt_u32 s69, 22\ns_cbranch_scc0 {lab}\n{st}\n{lab}:"
                        out.append(lambda st=st: (p(st, tag="gpub"), p.vm.pop()))
                    else:
                        out.append((st, "gpub"))
            return out

        def cost(it):
            if isinstance(it, tuple):
                return 0 if it[0] in ("vm", "lg") else (1 if "\n" not in it[0] else 2)
            if callable(it): return 2
            if "\n" in it: return 2
            return 2 if it.strip().startswith(("v_exp", "v_rcp", "v_rsq")) else 1
        gld = lambda rt, n: self.frag("a", greg(rt, n), 52 + 2 * rt, n, ("gf", rt, n), " sc1")
        self.gld = gld
        for a in range(4):
            q = []
            if a == 0:
                q += [(1, lambda: self.poll_wait(poll))] + [(1, it) for it in sld + hld(2)]
                q += [(4, it) for it in hwrite(1)] + [(9, it) for it in stats]
            else:
                e = epi(a - 1)
                if a == 1: q += [(0, it) for it in hld(3)]
                if a < 3:
                    q += [(2, it) for it in e[:20]] + [(5, it) for it in hwrite(a + 1)] + [(5, it) for it in e[20:]]
                else:
                    q += [(2, it) for it in e]
            g0 = list(range(22)) if a == 3 else []
            for ks in range(16):
                s = 16 * a + ks
                if a < 3 and ks == 12:
                    assert not any(isinstance(it, tuple) and it[1] == ("hw", a + 1) for _, it in q)
                    p.wait(lg=("hw", a + 1)); p("s_barrier")
                p.wait(lg=("b", s))
                for k in range(3):
                    d = ACC[a % 2] + 4 * k
                    p(m16(d, 64 + 64 * k + 4 * ks, ring[s % 4], None if ks == 0 else d, "a"))
                    n = 2
                    if k == 0 and s + 3 < 64:
                        p(brd(s + 3), tag=("b", s + 3)); n = 1
                    if g0 and g0[0] // 3 < ks and k:
                        self.emit(gld(0, g0.pop(0))); n -= 1
                    while q and q[0][0] <= ks and n > 0:
                        it = q.pop(0)[1]; n -= cost(it); self.emit(it)
            for _, it in q: self.emit(it)
            assert not g0
        self.stamp()
        for it in epi(3): self.emit(it)

    def w2(self):
        p = self.p
        ACC = (32, 64)
        poll = self.poll_ld(VPG, 54, -4096)
        p(poll, tag="poll")

        def mm(rt, k, ct):
            ka, ra = w2reg(2 * k + ct); d = ACC[rt] + 16 * ct
            return m32(d, ra, greg(rt, k), None if k == 0 else d, ka, "a")

        def check(rt):
            lab = self.lab(); l2 = self.lab()
            body = "\n".join(mm(rt, k, ct) for k in range(21) for ct in range(2))
            self.ool.append(f"{lab}S:\ns_sub_u32 s26, 22, s28\n" + self.verify_txt(VL, 52 + 2 * rt, "s26") +
                            "\n".join(self.gld(rt, n)[0] for n in range(22)) + "\ns_waitcnt vmcnt(0)\n" + body +
                            f"\ns_cmp_ge_u32 s3, 2\ns_cbranch_scc1 {l2}\n{mm(rt, 21, 0)}\n{mm(rt, 21, 1)}\n{l2}:\ns_nop 7\ns_nop 3\ns_branch {lab}B")
            return f"v_cmp_u_f32 vcc, v{ACC[rt]}, v{ACC[rt]}\ns_cbranch_vccnz {lab}S\n{lab}B:"

        def epi(rt):
            return self.tsum(rt, ACC[rt], HR + 4 * rt, XR + 4 * rt) + [f"global_store_dwordx4 v{VXO+rt}, {R('v', XR+4*rt)}, s[38:39]"]
        PW = self.opt.get("pw", 7)
        for rt in range(2):
            if rt == 0:
                q = [(PW, lambda: self.poll_wait(poll))] + [(PW, self.gld(1, n)) for n in range(22)]
            else:
                q = [(4, check(0))] + [(4, (t, "tw0")) for t in self.twrites(0, ACC[0])]
                q += [(12, "s_waitcnt lgkmcnt(0)\ns_barrier")] + [(12, it) for it in self.treads(0, ACC[0])] + [(14, it) for it in epi(0)]
            for k in range(22):
                lab = None
                if k == 21:
                    for _, it in q: self.emit(it)
                    q = []
                    lab = self.lab()
                    p(f"s_cmp_ge_u32 s3, 2\ns_cbranch_scc1 {lab}")
                p.wait(vm=[("w2", k), ("gf", rt, k)])
                for ct in range(2):
                    p(mm(rt, k, ct))
                    n = 4
                    while q and q[0][0] <= k and n > 0:
                        it = q.pop(0)[1]; self.emit(it)
                        n -= 1 if isinstance(it, str) and it.startswith("v_") else (0 if isinstance(it, tuple) and it[0] in ("lg", "vm") else 4)
                if lab: p(f"{lab}:")
            if rt == 0: self.stamp()
        self.stamp()
        p(check(1))
        for t in self.twrites(1, ACC[1]): p(t, tag="tw1")
        p("s_waitcnt lgkmcnt(0)\ns_barrier")
        for it in self.treads(1, ACC[1]) + epi(1): self.emit(it)


def gen(opt, prof, upto):
    k = K2("k2", opt, prof, 1)
    k.prologue(); k.attn(); k.wo(); k.w1(); k.w2(); k.finish()
    k.attn_fallback()
    while k.ool:
        t = k.ool.pop(0); k.p(t)
    k.p("k2_LAST:")
    return [("k2_kernel", k.p, ATT_LDS, 256)]
```
